```python
import torch

def _softmax(x, axis=-1):
    return torch.softmax(x, dim=axis)

def _gelu(x):
    return torch.nn.functional.gelu(x, approximate='tanh')

def _silu(x):
    return torch.nn.functional.silu(x)

def _sigmoid(x):
    return torch.sigmoid(x)

def _layernorm(x, axis=-1, eps=1e-05):
    m = x.mean(dim=axis, keepdim=True)
    v = x.var(dim=axis, keepdim=True, unbiased=False)
    return (x - m) / torch.sqrt(v + eps)

def _scatter_add(tgt, idx, src, axis=0):
    return tgt.clone().index_add_(axis, idx, src)

def _segment_sum(src, seg, n):
    out = torch.zeros((n,) + src.shape[1:], dtype=src.dtype)
    return out.index_add_(0, seg, src)

def _pad(x, pw):
    flat = tuple((v for pair in reversed(pw) for v in pair))
    return torch.nn.functional.pad(x, flat)
kernel_name = 'sequential_preLN__memory_aug_recurrent_mem_tr__glu_gated_swiglu__prompt'

def setup_inputs():

    _w = lambda a: (lambda t: t.to(torch.bfloat16) if t.is_floating_point() else t)(torch.as_tensor(a))

    def _A_setup():
        B, S, Dm = (1, 2048, 1024)
        H, Dh = (32, 128)
        M, seg = (8, 32)
        seg = min(seg, S)
        S = S // seg * seg
        return {'x': _w((lambda *s: torch.randn(*s, dtype=torch.bfloat16) * 0.05)(B, S, Dm)), 'mem0': _w((lambda *s: torch.randn(*s, dtype=torch.bfloat16) * 0.2)(B, M, Dm)), 'Wq': _w((lambda *s: torch.randn(*s, dtype=torch.bfloat16) * 1.6)(Dm, H, Dh) * Dm ** (-0.5)), 'Wk': _w((lambda *s: torch.randn(*s, dtype=torch.bfloat16) * 1.6)(Dm, H, Dh) * Dm ** (-0.5)), 'Wv': _w((lambda *s: torch.randn(*s, dtype=torch.bfloat16) * 0.2)(Dm, H, Dh) * Dm ** (-0.5)), 'Wo': _w((lambda *s: torch.randn(*s, dtype=torch.bfloat16) * 0.2)(H, Dh, Dm) * (H * Dh) ** (-0.5)), 'seg_len': seg}
    _A_in = _A_setup()

    def _B_setup():
        B, S, D, F = (1, 2048, 1024, 3584)
        return {'x': _w((lambda *s: torch.randn(*s, dtype=torch.bfloat16) * 0.05)(B, S, D)), 'w1': _w((lambda *s: torch.randn(*s, dtype=torch.bfloat16) * 0.2)(D, F) * (2.0 / D) ** 0.5), 'w3': _w((lambda *s: torch.randn(*s, dtype=torch.bfloat16) * 0.2)(D, F) * (2.0 / D) ** 0.5), 'w2': _w((lambda *s: torch.randn(*s, dtype=torch.bfloat16) * 0.2)(F, D) * (2.0 / F) ** 0.5)}
    _B_in = _B_setup()
    return {'A_x': _A_in['x'], 'A_mem0': _A_in['mem0'], 'A_Wq': _A_in['Wq'], 'A_Wk': _A_in['Wk'], 'A_Wv': _A_in['Wv'], 'A_Wo': _A_in['Wo'], 'A_seg_len': _A_in['seg_len'], 'B_x': _B_in['x'], 'B_w1': _B_in['w1'], 'B_w3': _B_in['w3'], 'B_w2': _B_in['w2']}

def reference(A_x, A_mem0, A_Wq, A_Wk, A_Wv, A_Wo, A_seg_len, B_x, B_w1, B_w3, B_w2):

    def _A_ref(x, mem0, Wq, Wk, Wv, Wo, seg_len):
        B, S, Dm = x.shape
        H, Dh = (Wq.shape[1], Wq.shape[2])
        M = mem0.shape[1]
        scale = Dh ** (-0.5)
        n_seg = S // seg_len
        L = M + seg_len
        idx = torch.arange(L)
        mask = (idx[:, None] < M) | (idx[:, None] >= idx[None, :])
        mem = mem0
        outs = []
        for s in range(n_seg):
            xs = x[:, s * seg_len:(s + 1) * seg_len, :].clone()
            h = torch.concatenate([mem, xs], axis=1)
            q = torch.einsum('btd,dhe->bhte', h, Wq)
            k = torch.einsum('btd,dhe->bhte', h, Wk)
            v = torch.einsum('btd,dhe->bhte', h, Wv)
            scores = torch.einsum('bhqe,bhke->bhqk', q, k) * scale
            scores = torch.where(mask[None, None], scores, -1000000000.0)
            p = _softmax(scores, axis=-1)
            o = torch.einsum('bhqk,bhke->bhqe', p, v)
            o = torch.einsum('bhte,hed->btd', o, Wo)
            mem = o[:, :M, :].clone()
            outs.append(o[:, M:, :])
        return torch.concatenate(outs, axis=1)

    def _B_ref(x, w1, w3, w2):
        gate = torch.einsum('bsd,df->bsf', x, w1)
        up = torch.einsum('bsd,df->bsf', x, w3)
        h = _silu(gate) * up
        out = torch.einsum('bsf,fd->bsd', h, w2)
        return out
    x = A_x
    h = x + _A_ref(_layernorm(x, axis=-1), A_mem0, A_Wq, A_Wk, A_Wv, A_Wo, A_seg_len)
    h2 = h + _B_ref(_layernorm(h, axis=-1), B_w1, B_w3, B_w2)
    return h2
```

```python
import re

TRANS = ("v_exp_f32", "v_log_f32", "v_rcp_f32", "v_rsq_f32", "v_sqrt_f32", "v_sin_f32", "v_cos_f32",
         "v_rcp_iflag_f32")

REG_RE = re.compile(r"^(-?)(?:abs\()?([vas])(?:\[(\d+):(\d+)\]|(\d+))\)?$")


def parse_reg(tok):
    tok = tok.strip()
    if tok.startswith("-"):
        t = tok[1:]
    else:
        t = tok
    if t.startswith("|") and t.endswith("|"):
        t = t[1:-1]
    if t in ("vcc",):
        return [("s", "vcc_lo"), ("s", "vcc_hi")]
    if t in ("vcc_lo", "vcc_hi", "m0", "exec_lo", "exec_hi", "scc"):
        return [("s", t)]
    if t == "exec":
        return [("s", "exec_lo"), ("s", "exec_hi")]
    m = REG_RE.match(t)
    if not m:
        return []
    kind = m.group(2)
    if m.group(3) is not None:
        return [(kind, i) for i in range(int(m.group(3)), int(m.group(4)) + 1)]
    return [(kind, int(m.group(5)))]


def mfma_passes(mn):
    if "32x32x16" in mn or "32x32x8" in mn or "32x32x32" in mn:
        return 8
    if "16x16x32" in mn or "16x16x16" in mn or "16x16x64" in mn:
        return 4
    if "4x4x4" in mn:
        return 2
    raise ValueError("unknown mfma " + mn)


class Ins:
    __slots__ = ("text", "mn", "ops", "mods", "kind", "dst", "src", "srcA", "srcB", "srcC", "passes",
                 "store_data", "is_dpp", "is_trans", "is_perm", "is_rl", "sgpr_const", "lds_dma", "nstates")

    def __init__(self, text):
        self.text = text
        t = text.split(";")[0].split("//")[0].strip()
        self.kind = None
        self.dst = set()
        self.src = set()
        self.srcA = self.srcB = self.srcC = set()
        self.passes = 0
        self.store_data = set()
        self.is_dpp = self.is_trans = self.is_perm = self.is_rl = False
        self.lds_dma = False
        self.nstates = 1
        if not t:
            self.kind = "empty"
            self.nstates = 0
            return
        if t.endswith(":"):
            self.kind = "label"
            self.nstates = 0
            return
        if t.startswith("."):
            self.kind = "directive"
            self.nstates = 0
            return
        parts = t.split(None, 1)
        mn = parts[0]
        self.mn = mn
        rest = parts[1] if len(parts) > 1 else ""
        ops = []
        cur = ""
        depth = 0
        for ch in rest:
            if ch in "[(":
                depth += 1
            if ch in "])":
                depth -= 1
            if ch == "," and depth == 0:
                ops.append(cur.strip())
                cur = ""
            else:
                cur += ch
        if cur.strip():
            ops.append(cur.strip())
        mods = ""
        if ops:
            last = ops[-1].split(None, 1)
            ops[-1] = last[0]
            if len(last) > 1:
                mods = last[1]
        self.ops = ops
        self.mods = mods
        R = [parse_reg(o) for o in ops]
        base = mn
        for suf in ("_e32", "_e64", "_dpp", "_sdwa"):
            if base.endswith(suf):
                base = base[: -len(suf)]
        if mn == "s_nop":
            self.kind = "nop"
            self.nstates = int(ops[0], 0) + 1
            return
        if mn.startswith("v_mfma") or mn.startswith("v_smfmac"):
            self.kind = "mfma"
            self.passes = mfma_passes(mn)
            self.dst = set(R[0])
            self.srcA = set(R[1])
            self.srcB = set(R[2])
            if mn.startswith("v_smfmac"):
                self.srcC = set(R[0])
                self.srcB |= set(R[3])
            else:
                self.srcC = set(R[3])
            self.src = self.srcA | self.srcB | self.srcC
            return
        if mn.startswith("v_"):
            self.kind = "valu"
            self.is_dpp = ("row_" in mods or "quad_perm" in mods or "wave_" in mods or mn.endswith("_dpp")
                           or "row_" in rest)
            self.is_trans = base in TRANS
            if base.startswith("v_permlane"):
                self.is_perm = True
                self.dst = set(R[0]) | set(R[1])
                self.src = set(R[0]) | set(R[1])
                return
            if base in ("v_readfirstlane_b32", "v_readlane_b32"):
                self.is_rl = True
                self.dst = set(R[0])
                self.src = set(x for r in R[1:] for x in r)
                return
            if base.startswith("v_cmpx"):
                raise ValueError("v_cmpx not supported by hazard pass")
            if base in ("v_add_co_u32", "v_sub_co_u32", "v_addc_co_u32", "v_subb_co_u32", "v_mad_u64_u32",
                        "v_div_scale_f32"):
                self.dst = set(R[0]) | set(R[1])
                self.src = set(x for r in R[2:] for x in r)
                return
            self.dst = set(R[0])
            self.src = set(x for r in R[1:] for x in r)
            if base in ("v_fmac_f32", "v_pk_fmac_f16", "v_writelane_b32", "v_dot2c_f32_bf16", "v_fmac_f16"):
                self.src |= set(R[0])
            if base == "v_cndmask_b32" and len(ops) == 3:
                self.src |= set(parse_reg("vcc"))
            if self.is_dpp:
                self.src |= set(R[0])
            return
        if mn.startswith("ds_"):
            self.kind = "ds"
            if mn.startswith("ds_read") or mn.startswith("ds_bpermute") or mn.startswith("ds_permute") \
                    or mn.startswith("ds_swizzle"):
                self.dst = set(R[0])
                self.src = set(x for r in R[1:] for x in r)
            else:
                self.src = set(x for r in R for x in r)
                self.store_data = set(x for r in R[1:] for x in r)
            return
        if mn.startswith("buffer_") or mn.startswith("global_"):
            self.kind = "vmem"
            allm = " " + mods + " "
            self.lds_dma = (" lds " in allm) or mn.startswith("global_load_lds")
            if mn in ("buffer_inv", "buffer_wbl2"):
                return
            if mn.startswith("buffer_load"):
                if self.lds_dma:
                    self.src = set(x for r in R for x in r) | {("s", "m0")}
                else:
                    self.dst = set(R[0])
                    self.src = set(x for r in R[1:] for x in r)
            elif mn.startswith("buffer_store"):
                self.src = set(x for r in R for x in r)
                if "x3" in mn or "x4" in mn:
                    self.store_data = set(R[0])
            elif mn.startswith("buffer_atomic"):
                self.src = set(x for r in R for x in r)
                if " sc0 " in allm:
                    self.dst = set(R[0])
            elif mn.startswith("global_load_lds"):
                self.src = set(x for r in R for x in r) | {("s", "m0")}
            elif mn.startswith("global_load"):
                self.dst = set(R[0])
                self.src = set(x for r in R[1:] for x in r)
            elif mn.startswith("global_store"):
                self.src = set(x for r in R for x in r)
                if "x3" in mn or "x4" in mn:
                    self.store_data = set(R[1])
            elif mn.startswith("global_atomic"):
                if " sc0 " in allm:
                    self.dst = set(R[0])
                    self.src = set(x for r in R[1:] for x in r)
                else:
                    self.src = set(x for r in R for x in r)
            else:
                raise ValueError("unknown vmem " + text)
            return
        if mn.startswith("s_"):
            if mn.startswith("s_branch") or mn.startswith("s_cbranch") or mn in ("s_endpgm", "s_setpc_b64",
                                                                                 "s_swappc_b64"):
                self.kind = "branch"
                return
            if mn.startswith("s_load") or mn in ("s_memtime", "s_memrealtime"):
                self.kind = "smem"
                self.dst = set(R[0])
                self.src = set(x for r in R[1:] for x in r)
                return
            self.kind = "salu"
            if mn in ("s_waitcnt", "s_barrier", "s_setprio", "s_sleep") or mn.startswith("s_cmp") \
                    or mn.startswith("s_bitcmp"):
                self.src = set(x for r in R for x in r)
                return
            if R:
                self.dst = set(R[0])
                self.src = set(x for r in R[1:] for x in r)
                if "saveexec" in mn:
                    self.dst |= set(parse_reg("exec"))
            return
        raise ValueError("cannot classify: " + text)


def is_vec(regs):
    return {r for r in regs if r[0] in "va"}


def is_sreg(regs):
    return {r for r in regs if r[0] == "s"}


def required(prod, cons):
    need = 0
    if prod.kind == "valu":
        pv = is_vec(prod.dst)
        ps = is_sreg(prod.dst)
        if pv:
            if cons.kind == "mfma" and pv & cons.src:
                need = max(need, 2)
            if cons.kind == "valu":
                if cons.is_perm and pv & cons.src:
                    need = max(need, 2)
                if cons.is_dpp and pv & cons.src:
                    need = max(need, 2)
                if cons.is_rl and pv & cons.src:
                    need = max(need, 1)
                if prod.is_trans and not cons.is_trans and pv & cons.src:
                    need = max(need, 1)
            if prod.is_trans and cons.kind in ("vmem", "ds") and pv & cons.src:
                need = max(need, 1)
        if ps:
            if cons.kind == "valu" and ps & cons.src:
                need = max(need, 4 if cons.is_rl else 2)
            if cons.kind == "vmem" and ps & cons.src:
                need = max(need, 5)
            if cons.kind in ("salu", "smem") and ps & cons.src:
                need = max(need, 4)
            if cons.kind == "mfma" and ps & {("s", "exec_lo"), ("s", "exec_hi")}:
                need = max(need, 4)
    if prod.kind == "mfma":
        p = prod.passes
        d = prod.dst
        if cons.kind == "mfma":
            if d & (cons.srcA | cons.srcB):
                need = max(need, {2: 5, 4: 8, 8: 12}[p])
            if d & cons.srcC:
                if not (d == cons.srcC and cons.passes == p and cons.mn == prod.mn):
                    need = max(need, {2: 4, 4: 6, 8: 10}[p])
                elif p == 2:
                    need = max(need, 2)
            if d & cons.dst and not (d & cons.srcC):
                need = max(need, {2: 5, 4: 8, 8: 12}[p])
        elif cons.kind in ("valu", "vmem", "ds"):
            if d & (cons.src | cons.dst):
                need = max(need, {2: 5, 4: 8, 8: 12}[p])
        if cons.kind == "valu" and prod.srcC & cons.dst:
            need = max(need, {2: 1, 4: 3, 8: 7}[p])
        if cons.kind in ("ds", "vmem") and prod.srcC & cons.dst:
            need = max(need, {2: 1, 4: 3, 8: 7}[p])
    if prod.kind == "salu":
        if ("s", "m0") in prod.dst and (cons.lds_dma or (cons.kind == "ds" and "addtid" in cons.mn)):
            need = max(need, 1)
    if prod.kind in ("vmem", "ds") and prod.store_data and prod.kind == "vmem":
        if prod.store_data & cons.dst:
            need = max(need, 2 if cons.kind == "valu" else 1)
    return need


MAXLOOK = 21


def _trim(h):
    tot = 0
    k = len(h)
    while k > 0 and tot < MAXLOOK:
        k -= 1
        tot += h[k].nstates
    return tuple(h[k:])


def _need(hist, ins):
    dist = 0
    extra = 0
    for prev in reversed(hist):
        if dist >= MAXLOOK:
            break
        need = required(prev, ins)
        if need > dist:
            extra = max(extra, need - dist)
        dist += prev.nstates
    return extra


def hazard_pass(lines, verbose=False):
    parsed = [Ins(t) for t in lines]
    extra_at = [0] * len(parsed)
    label_in = {}
    nopc = {}

    def mknop(k):
        if k not in nopc:
            nopc[k] = Ins("s_nop %d" % (k - 1))
        return nopc[k]

    for it in range(12):
        changed = False
        states = {()}
        for idx, ins in enumerate(parsed):
            if ins.kind == "label":
                name = ins.text.strip()[:-1]
                states = set(states) | label_in.get(name, set())
                if len(states) > 64:
                    raise RuntimeError("too many hazard states at " + name)
                continue
            if ins.kind in ("empty", "directive"):
                if ins.kind == "directive" and ins.text.strip().startswith((".section", ".text", ".amdhsa_kernel", ".p2align")):
                    if not ins.text.strip().startswith(".p2align"):
                        states = {()}
                continue
            if not states:
                states = {()}
            need = 0
            for h in states:
                need = max(need, _need(h, ins))
            if need > extra_at[idx]:
                extra_at[idx] = need
                changed = True
            e = extra_at[idx]
            add = []
            while e > 0:
                k = min(e, 16)
                add.append(mknop(k))
                e -= k
            add.append(ins)
            states = {_trim(h + tuple(add)) for h in states}
            if ins.kind == "branch":
                if ins.mn in ("s_branch",) or ins.mn.startswith("s_cbranch"):
                    tgt = ins.ops[0]
                    old = label_in.setdefault(tgt, set())
                    n0 = len(old)
                    old |= states
                    if len(old) != n0:
                        changed = True
                if ins.mn in ("s_branch", "s_endpgm", "s_setpc_b64"):
                    states = set()
        if not changed:
            break
    else:
        raise RuntimeError("hazard pass did not converge")
    out = []
    n_ins = 0
    for idx, text in enumerate(lines):
        e = extra_at[idx]
        while e > 0:
            k = min(e, 16)
            out.append("    s_nop %d" % (k - 1))
            e -= k
            n_ins += 1
        out.append(text)
    if verbose:
        print("hazard pass inserted", n_ins, "nops")
    return out


class Asm:
    def __init__(self):
        self.lines = []
        self._uid = 0

    def __call__(self, s):
        for l in s.split("\n"):
            l = l.rstrip()
            if not l.strip():
                continue
            st = l.strip()
            if st.endswith(":") or st.startswith("."):
                self.lines.append(st)
            else:
                self.lines.append("    " + st)

    def label(self, name):
        self.lines.append(name + ":")

    def uid(self, p="L"):
        self._uid += 1
        return "%s_%d" % (p, self._uid)

    def comment(self, s):
        self.lines.append("    ; " + s)

    def fence(self, n=12):
        while n > 0:
            k = min(n, 16)
            self.lines.append("    s_nop %d" % (k - 1))
            n -= k

    def text(self, hazards=True, verbose=False):
        lines = self.lines
        if hazards:
            lines = hazard_pass(lines, verbose)
        return "\n".join(lines) + "\n"


def vr(base, n=1):
    return "v%d" % base if n == 1 else "v[%d:%d]" % (base, base + n - 1)


def ar(base, n=1):
    return "a%d" % base if n == 1 else "a[%d:%d]" % (base, base + n - 1)


def sr(base, n=1):
    return "s%d" % base if n == 1 else "s[%d:%d]" % (base, base + n - 1)
```

```python
from asmgen import Asm, vr, ar, sr
from layout import *

S_WS = 4
SRD_COMM = 8
SRD_KV = 12
SRD_KVM = 16
SRD_TMP = 20
S_X, S_C, S_G, S_U, S_W, S_STEP = 24, 25, 26, 27, 28, 29
S_SL = 30
S_FAIL = 34
S_K0, S_K1, S_V0, S_V1 = 42, 43, 44, 45
S_TOUCH, S_KVMO = 46, 47
S_SPIN = 48
S_CSC = 49
S_HH, S_EQ, S_HB, S_HC = 50, 51, 52, 53
S_A, S_B = 54, 55
S_TS = 56
S_MASK = 58
S_ACC = 60
S_ERR = 70
S_ST = 72
NSTAMP = 10

V_LANE, V_IDX, V_SEL1, V_SEL2, V_N, V_G = 0, 1, 2, 4, 6, 7
V_ONES = 8
V_NEG = 12
V_SENT = 16
V_ALD, V_AST, V_BLD, V_BST, V_CX, V_CV, V_CST, V_KT, V_KVM, V_TOUCH = range(20, 30)
V_RBW, V_RBR, V_OBW, V_OBR = 30, 31, 32, 33
V_SA0 = 36
V_KTOK = 40
V_VTOK = 72
V_VOT = 104
V_MEM = 120
V_ACCB = 136
V_OUT = 136
V_SUM = 152
V_XR = 160
V_VM = 176
V_VOTA = 160
V_PA = 176
V_S = 192
V_VOMA = 204
V_VOM = 220
V_P = 228
V_HOLD = 236
V_SA1 = 240
V_T = 244


def A_W(tau, kq):
    return (tau * 4 + kq) * 8


def A_WO(nt, ks):
    return 192 + (nt * 4 + ks) * 4


def srd(a, s, plo, off, size):
    a(f"s_add_u32 s{s}, s{plo}, {hex(off)}")
    a(f"s_addc_u32 s{s+1}, s{plo+1}, 0")
    a(f"s_mov_b32 s{s+2}, {hex(size)}")
    a(f"s_mov_b32 s{s+3}, 0x20000")


def interleave(main, fill, first=0, every=1):
    out = []
    fi = 0
    for i, m in enumerate(main):
        out.append(m)
        if i >= first and (i - first) % every == 0 and fi < len(fill):
            out.append(fill[fi])
            fi += 1
    out.extend(fill[fi:])
    return out


class Chain:
    def __init__(self, a, name, timing=False, nsteps=64, fast=True, WA=3, WT=2, opt=None):
        self.a = a
        self.name = name
        self.timing = timing
        self.nsteps = nsteps
        self.local = "" if fast else " sc1"
        self.WA = WA
        self.WT = WT
        self.opt = opt or {}

    def stamp(self, i):
        if self.timing:
            self.a(f"s_memtime s[{S_ST+2*i}:{S_ST+2*i+1}]")

    def stamp_flush(self, n):
        if not self.timing:
            return
        a = self.a
        a("s_waitcnt lgkmcnt(0)")
        for i in range(n):
            a(f"s_sub_u32 s{S_A}, s{S_ST+2*(i+1)}, s{S_ST+2*i}")
            a(f"s_add_u32 s{S_ACC+i}, s{S_ACC+i}, s{S_A}")
        a(f"s_mov_b32 s{S_ST}, s{S_ST+2*n}")

    def check_sentinel(self, regs, tmp):
        a = self.a
        outs = list(regs)
        ti = 0
        first = True
        while len(outs) > 1:
            nxt = []
            i = 0
            while i < len(outs):
                grp = outs[i:i + 3]
                if len(grp) == 1:
                    nxt.append(grp[0])
                else:
                    own = [g for g in grp if g >= tmp]
                    if own:
                        t = own[0]
                    else:
                        t = tmp + ti
                        ti += 1
                    if len(grp) == 3:
                        a(f"v_max3_u32 v{t}, v{grp[0]}, v{grp[1]}, v{grp[2]}")
                    else:
                        a(f"v_max_u32 v{t}, v{grp[0]}, v{grp[1]}")
                    nxt.append(t)
                i += 3
            outs = nxt
        assert ti <= 12
        a(f"v_cmp_eq_u32 vcc, -1, v{outs[0]}")

    def poll(self, issue, regs, site, pre_issued=False):
        a = self.a
        W = a.uid("pw")
        D = a.uid("done")
        if not pre_issued:
            issue()
        a.label(W)
        a("s_waitcnt vmcnt(0)")
        self.check_sentinel(regs, V_T)
        a(f"s_cbranch_vccz {D}")
        issue()
        if self.timing:
            a(f"s_add_u32 s{S_FAIL+site}, s{S_FAIL+site}, 1")
        a(f"s_sub_u32 s{S_SPIN}, s{S_SPIN}, 1")
        a(f"s_cbranch_scc0 {W}")
        a(f"s_mov_b32 s{S_ERR}, {site+1}")
        a(f"s_branch {self.name}_end")
        a.label(D)

    @staticmethod
    def mix(main, fill):
        out = []
        n = len(main)
        fi = 0
        for i, m in enumerate(main):
            out.append(m)
            upto = (len(fill) * (i + 1) + n - 1) // n
            while fi < min(upto, len(fill)):
                out.append(fill[fi])
                fi += 1
        out.extend(fill[fi:])
        return out

    def roles(self):
        a = self.a
        n = self.name
        a(f"s_cmp_ge_u32 s2, 256")
        a(f"s_cbranch_scc1 {n}_exit")
        a(f"s_load_dwordx2 s[{S_WS}:{S_WS+1}], s[0:1], {KA_WS}")
        a(f"s_getreg_b32 s{S_X}, hwreg(HW_REG_XCC_ID,0,4)")
        a(f"v_lshrrev_b32 v1, 6, v0")
        a(f"v_and_b32 v{V_LANE}, 63, v0")
        a(f"v_readfirstlane_b32 s{S_W}, v1")
        a("s_waitcnt lgkmcnt(0)")
        srd(a, SRD_TMP, S_WS, CNT, 4096)
        L = a.uid("tk")
        a(f"v_mov_b32 v4, 0")
        a(f"s_cmp_lg_u32 s{S_W}, 0")
        a(f"s_cbranch_scc1 {L}")
        a(f"s_lshl_b32 s{S_A}, s{S_X}, 7")
        a(f"v_mov_b32 v2, s{S_A}")
        a(f"v_mov_b32 v3, 1")
        a("s_mov_b64 exec, 1")
        a(f"buffer_atomic_add v3, v2, s[{SRD_TMP}:{SRD_TMP+3}], 0 offen sc0")
        a("s_waitcnt vmcnt(0)")
        a("ds_write_b32 v4, v3")
        a("s_mov_b64 exec, -1")
        a.label(L)
        a("s_waitcnt lgkmcnt(0)")
        a("s_barrier")
        a("ds_read_b32 v3, v4")
        a("s_waitcnt lgkmcnt(0)")
        a(f"v_readfirstlane_b32 s{S_C}, v3")
        a("s_barrier")
        a(f"s_cmp_ge_u32 s{S_X}, 4")
        a(f"s_cbranch_scc1 {n}_exit")
        a(f"s_cmp_ge_u32 s{S_C}, 32")
        a(f"s_cbranch_scc1 {n}_exit")
        a(f"s_lshr_b32 s{S_A}, s{S_C}, 4")
        a(f"s_lshl_b32 s{S_G}, s{S_X}, 1")
        a(f"s_add_u32 s{S_G}, s{S_G}, s{S_A}")
        a(f"s_and_b32 s{S_U}, s{S_C}, 15")
        a(f"s_lshr_b32 s{S_HH}, s{S_U}, 2")
        a(f"s_and_b32 s{S_EQ}, s{S_U}, 3")
        a(f"s_lshl_b32 s{S_A}, s{S_G}, 2")
        a(f"s_add_u32 s{S_HB}, s{S_A}, s{S_HH}")
        a(f"s_add_u32 s{S_HC}, s{S_A}, s{S_W}")

    def consts(self):
        a = self.a
        T = V_T
        a(f"v_and_b32 v{V_N}, 15, v{V_LANE}")
        a(f"v_lshrrev_b32 v{V_G}, 4, v{V_LANE}")
        a(f"v_mov_b32 v{T}, 0x44444444")
        a(f"v_mov_b32 v{T+1}, 0xeeeeeeee")
        a(f"v_cmp_gt_u32 vcc, 8, v{V_N}")
        a(f"v_cndmask_b32 v{V_IDX}, v{T+1}, v{T}, vcc")
        a(f"v_and_b32 v{T}, 7, v{V_N}")
        a(f"v_lshlrev_b32 v{T+1}, 2, v{V_G}")
        a(f"v_sub_u32 v{T+2}, v{T}, v{T+1}")
        a(f"v_add_u32 v{T+3}, 8, v{T+2}")
        a(f"v_mov_b32 v{T+4}, 0x3f80")
        a(f"v_mov_b32 v{T+5}, 0x3f800000")
        for sel, d in ((V_SEL1, T + 2), (V_SEL2, T + 3)):
            for r in range(2):
                a(f"v_cmp_eq_u32 vcc, {2*r}, v{d}")
                a(f"v_cndmask_b32 v{sel+r}, 0, v{T+4}, vcc")
                a(f"v_cmp_eq_u32 vcc, {2*r+1}, v{d}")
                a(f"v_cndmask_b32 v{sel+r}, v{sel+r}, v{T+5}, vcc")
        a(f"v_add_u32 v{T+3}, -8, v{V_N}")
        for sa, d in ((V_SA0, V_N), (V_SA1, T + 3)):
            for r in range(4):
                a(f"v_cmp_eq_u32 vcc, {2*r}, v{d}")
                a(f"v_cndmask_b32 v{sa+r}, 0, v{T+4}, vcc")
                a(f"v_cmp_eq_u32 vcc, {2*r+1}, v{d}")
                a(f"v_cndmask_b32 v{sa+r}, v{sa+r}, v{T+5}, vcc")
        for r in range(4):
            a(f"v_mov_b32 v{V_ONES+r}, 0x3f803f80")
            a(f"v_mov_b32 v{V_SENT+r}, -1")
        a(f"v_mov_b32 v{T}, 0xff000000")
        a(f"v_cmp_gt_u32 vcc, 2, v{V_G}")
        for r in range(4):
            a(f"v_cndmask_b32 v{V_NEG+r}, 0, v{T}, vcc")
        a(f"s_mov_b32 s{S_CSC}, 0x3e0293ee")
        OOB = "0x80000000"
        L16 = T + 6
        a(f"v_lshlrev_b32 v{L16}, 4, v{V_LANE}")
        a(f"s_lshl_b32 s{S_A}, s{S_C}, 12")
        a(f"s_add_u32 s{S_A}, s{S_A}, {hex(C_PART)}")
        a(f"v_add_u32 v{V_ALD}, s{S_A}, v{L16}")
        a(f"s_lshl_b32 s{S_A}, s{S_X}, 14")
        a(f"s_add_u32 s{S_A}, s{S_A}, {hex(C_MEM)}")
        a(f"s_lshl_b32 s{S_B}, s{S_C}, 9")
        a(f"s_add_u32 s{S_B}, s{S_B}, s{S_A}")
        a(f"v_lshrrev_b32 v{T}, 1, v{V_G}")
        a(f"v_lshlrev_b32 v{T}, 8, v{T}")
        a(f"v_lshl_add_u32 v{T}, v{V_N}, 4, v{T}")
        a(f"v_and_b32 v{T+1}, 1, v{V_G}")
        a(f"v_lshl_add_u32 v{T}, v{T+1}, 3, v{T}")
        a(f"v_add_u32 v{V_AST}, s{S_B}, v{T}")
        a(f"s_lshl_b32 s{S_B}, s{S_W}, 12")
        a(f"s_add_u32 s{S_B}, s{S_B}, s{S_A}")
        a(f"v_add_u32 v{V_BLD}, s{S_B}, v{L16}")
        a(f"s_lshl_b32 s{S_A}, s{S_G}, 14")
        a(f"s_add_u32 s{S_A}, s{S_A}, {hex(C_X)}")
        a(f"s_lshl_b32 s{S_B}, s{S_W}, 12")
        a(f"s_add_u32 s{S_B}, s{S_B}, s{S_A}")
        a(f"v_add_u32 v{V_CX}, s{S_B}, v{L16}")
        a(f"s_lshl_b32 s{S_B}, s{S_U}, 10")
        a(f"s_add_u32 s{S_B}, s{S_B}, s{S_A}")
        a(f"v_add_u32 v{T+7}, s{S_B}, v{L16}")
        a(f"s_lshl_b32 s{S_A}, s{S_G}, 13")
        a(f"s_add_u32 s{S_A}, s{S_A}, {hex(C_V)}")
        a(f"s_lshl_b32 s{S_B}, s{S_W}, 11")
        a(f"s_add_u32 s{S_B}, s{S_B}, s{S_A}")
        a(f"v_add_u32 v{V_CV}, s{S_B}, v{L16}")
        a(f"s_lshr_b32 s{S_B}, s{S_U}, 1")
        a(f"s_lshl_b32 s{S_B}, s{S_B}, 10")
        a(f"s_add_u32 s{S_B}, s{S_B}, s{S_A}")
        a(f"v_add_u32 v{T+8}, s{S_B}, v{L16}")
        a(f"v_lshrrev_b32 v{T}, 3, v{V_N}")
        a(f"s_and_b32 s{S_A}, s{S_EQ}, 1")
        a(f"s_cmp_eq_u32 s{S_W}, 2")
        a(f"s_cselect_b32 s{S_A}, s{S_A}, s{S_W}")
        a(f"s_cselect_b64 vcc, -1, 0")
        a(f"v_cndmask_b32 v{T+1}, v{T+7}, v{T+8}, vcc")
        a(f"v_cmp_eq_u32 vcc, s{S_A}, v{T}")
        a(f"v_mov_b32 v{T+2}, {OOB}")
        a(f"v_cndmask_b32 v{V_BST}, v{T+2}, v{T+1}, vcc")
        a(f"s_lshl_b32 s{S_A}, s{S_HB}, 11")
        a(f"s_lshl_b32 s{S_B}, s{S_EQ}, 9")
        a(f"s_add_u32 s{S_A}, s{S_A}, s{S_B}")
        a(f"s_cmp_eq_u32 s{S_W}, 2")
        a(f"s_cselect_b32 s{S_B}, {hex(KVMV-KVMK)}, 0")
        a(f"s_add_u32 s{S_A}, s{S_A}, s{S_B}")
        a(f"v_lshlrev_b32 v{T}, 3, v{V_G}")
        a(f"v_add_u32 v{T}, v{T}, v{V_N}")
        a(f"v_lshlrev_b32 v{T}, 4, v{T}")
        a(f"v_add_u32 v{T}, s{S_A}, v{T}")
        a(f"s_sub_u32 s{S_B}, s{S_W}, 1")
        a(f"s_cmp_lt_u32 s{S_B}, 2")
        a(f"s_cselect_b32 s{S_B}, 8, 0")
        a(f"v_cmp_gt_u32 vcc, s{S_B}, v{V_N}")
        a(f"v_cndmask_b32 v{V_KVM}, v{T+2}, v{T}, vcc")
        a(f"v_and_b32 v{T}, 7, v{V_N}")
        a(f"v_lshrrev_b32 v{T+1}, 1, v{V_G}")
        a(f"v_lshl_add_u32 v{T}, v{T+1}, 3, v{T}")
        a(f"v_lshlrev_b32 v{T}, 4, v{T}")
        a(f"v_lshrrev_b32 v{T+1}, 3, v{V_N}")
        a(f"v_lshl_add_u32 v{T}, v{T+1}, 11, v{T}")
        a(f"s_lshl_b32 s{S_A}, s{S_U}, 1")
        a(f"s_add_u32 s{S_A}, s{S_A}, s{S_W}")
        a(f"s_lshl_b32 s{S_A}, s{S_A}, 12")
        a(f"s_lshl_b32 s{S_B}, s{S_G}, 8")
        a(f"s_add_u32 s{S_A}, s{S_A}, s{S_B}")
        a(f"s_add_u32 s{S_A}, s{S_A}, {hex(C_PART)}")
        a(f"v_add_u32 v{T}, s{S_A}, v{T}")
        a(f"s_cmp_lt_u32 s{S_W}, 2")
        a(f"s_cselect_b32 s{S_B}, 0, 3")
        a(f"v_and_b32 v{T+1}, 1, v{V_G}")
        a(f"v_cmp_eq_u32 vcc, s{S_B}, v{T+1}")
        a(f"v_cndmask_b32 v{V_CST}, v{T+2}, v{T}, vcc")
        a(f"s_lshl_b32 s{S_A}, s{S_HC}, 12")
        a(f"v_add_u32 v{V_KT}, s{S_A}, v{L16}")
        a(f"s_lshl_b32 s{S_A}, s{S_C}, 6")
        a(f"v_add_u32 v{T}, s{S_A}, v{V_LANE}")
        a(f"v_lshrrev_b32 v{T+1}, 10, v{T}")
        a(f"v_lshlrev_b32 v{T+1}, 24, v{T+1}")
        a(f"v_bfe_u32 v{T+3}, v{T}, 9, 1")
        a(f"v_lshl_add_u32 v{T+1}, v{T+3}, 17, v{T+1}")
        a(f"v_and_b32 v{T+3}, 511, v{T}")
        a(f"v_lshl_add_u32 v{T+1}, v{T+3}, 6, v{T+1}")
        a(f"s_lshl_b32 s{S_A}, s{S_X}, 15")
        a(f"v_add_u32 v{V_TOUCH}, s{S_A}, v{T+1}")
        a(f"s_lshl_b32 s{S_A}, s{S_W}, 10")
        a(f"v_add_u32 v{V_RBW}, s{S_A}, v{L16}")
        a(f"s_min_u32 s{S_A}, s{S_W}, 2")
        a(f"s_lshl_b32 s{S_A}, s{S_A}, 12")
        a(f"v_add_u32 v{V_RBR}, s{S_A}, v{L16}")
        a(f"s_lshl_b32 s{S_A}, s{S_W}, 11")
        a(f"s_add_u32 s{S_A}, s{S_A}, 0x3000")
        a(f"v_add_u32 v{V_OBW}, s{S_A}, v{L16}")
        a(f"s_and_b32 s{S_A}, s{S_W}, 1")
        a(f"s_lshl_b32 s{S_A}, s{S_A}, 10")
        a(f"s_add_u32 s{S_A}, s{S_A}, 0x3000")
        a(f"v_add_u32 v{V_OBR}, s{S_A}, v{L16}")
        srd(a, SRD_COMM, S_WS, COMM, 4 * SLOT)
        srd(a, SRD_KV, S_WS, KT, 0x2000000)
        srd(a, SRD_KVM, S_WS, KVMK, 0x800000)
        for j in range(4):
            a(f"s_mov_b32 s{S_SL+j}, {hex(j*SLOT)}")

    def dma_block(self, voff, nblk, sstep, ldsreg):
        a = self.a
        a(f"s_mov_b32 s{S_B}, 0")
        a(f"s_mov_b32 m0, s{ldsreg}")
        for j in range(nblk):
            a("s_nop 0")
            a(f"buffer_load_dwordx4 v{voff}, s[{SRD_TMP}:{SRD_TMP+3}], s{S_B} offen lds")
            if j + 1 < nblk:
                a(f"s_add_u32 s{S_B}, s{S_B}, {hex(sstep)}")
                a(f"s_add_u32 m0, m0, 1024")

    def preload(self):
        a = self.a
        T = V_T
        S_L = S_TS
        a(f"v_lshrrev_b32 v{T}, 2, v{V_LANE}")
        a(f"v_lshlrev_b32 v{T}, 13, v{T}")
        a(f"v_and_b32 v{T+1}, 3, v{V_LANE}")
        a(f"v_lshl_add_u32 v{T}, v{T+1}, 4, v{T}")
        a(f"s_lshl_b32 s{S_A}, s{S_HB}, 8")
        a(f"s_lshl_b32 s{S_B}, s{S_EQ}, 6")
        a(f"s_add_u32 s{S_A}, s{S_A}, s{S_B}")
        a(f"s_lshl_b32 s{S_B}, s{S_W}, 21")
        a(f"s_add_u32 s{S_A}, s{S_A}, s{S_B}")
        a(f"v_add_u32 v{T}, s{S_A}, v{T}")
        a(f"v_lshrrev_b32 v{T+1}, 3, v{V_LANE}")
        a(f"v_lshlrev_b32 v{T+1}, 11, v{T+1}")
        a(f"v_and_b32 v{T+2}, 7, v{V_LANE}")
        a(f"v_lshl_add_u32 v{T+1}, v{T+2}, 4, v{T+1}")
        a(f"s_lshl_b32 s{S_A}, s{S_HC}, 18")
        a(f"s_lshl_b32 s{S_B}, s{S_U}, 7")
        a(f"s_add_u32 s{S_A}, s{S_A}, s{S_B}")
        a(f"v_add_u32 v{T+1}, s{S_A}, v{T+1}")
        a(f"v_lshrrev_b32 v{T+2}, 5, v{V_LANE}")
        a(f"v_lshlrev_b32 v{T+2}, 4, v{T+2}")
        a(f"v_bfe_u32 v{T+3}, v{V_LANE}, 4, 1")
        a(f"v_lshl_add_u32 v{T+2}, v{T+3}, 2, v{T+2}")
        a(f"v_bfe_u32 v{T+3}, v{V_LANE}, 2, 1")
        a(f"v_add_u32 v{T+2}, v{T+2}, v{T+3}")
        a(f"v_bfe_u32 v{T+3}, v{V_LANE}, 3, 1")
        a(f"v_lshl_add_u32 v{T+2}, v{T+3}, 3, v{T+2}")
        a(f"v_lshlrev_b32 v{T+2}, 6, v{T+2}")
        a(f"v_and_b32 v{T+3}, 3, v{V_LANE}")
        a(f"v_lshl_add_u32 v{T+2}, v{T+3}, 3, v{T+2}")
        a(f"s_lshl_b32 s{S_L}, s{S_W}, 15")
        a(f"v_add_u32 v{T+2}, s{S_L}, v{T+2}")
        a(f"v_lshrrev_b32 v{T+4}, 2, v{V_LANE}")
        a(f"v_lshlrev_b32 v{T+4}, 7, v{T+4}")
        a(f"v_lshl_add_u32 v{T+4}, v{T+3}, 3, v{T+4}")
        a(f"v_add_u32 v{T+4}, s{S_L}, v{T+4}")
        a(f"v_add_u32 v{T+4}, 0x4000, v{T+4}")

        def load_ptr(ka, size):
            a(f"s_load_dwordx2 s[{SRD_TMP}:{SRD_TMP+1}], s[0:1], {ka}")
            a("s_waitcnt lgkmcnt(0)")
            a(f"s_mov_b32 s{SRD_TMP+2}, {hex(size)}")
            a(f"s_mov_b32 s{SRD_TMP+3}, 0x20000")

        def tr_qkv(tau0, region):
            for t in range(2):
                for kq in range(4):
                    for jq in range(4):
                        off = region + kq * 4096 + (jq & 1) * 128 + (jq >> 1) * 2048 + 32 * t
                        d = A_W(tau0 + t, kq) + 2 * jq
                        a(f"ds_read_b64_tr_b16 a[{d}:{d+1}], v{T+2} offset:{off}")
                    a("s_waitcnt lgkmcnt(0)")

        load_ptr(KA_WQ, 0x800000)
        self.dma_block(T, 16, 0x20000, S_L)
        load_ptr(KA_WK, 0x800000)
        a(f"s_add_u32 s{S_L}, s{S_L}, 0x4000")
        self.dma_block(T, 16, 0x20000, S_L)
        a("s_waitcnt vmcnt(16)")
        tr_qkv(0, 0)
        a("s_waitcnt vmcnt(0)")
        tr_qkv(2, 0x4000)
        load_ptr(KA_WV, 0x800000)
        a(f"s_sub_u32 s{S_L}, s{S_L}, 0x4000")
        self.dma_block(T, 16, 0x20000, S_L)
        load_ptr(KA_WO, 0x800000)
        a(f"s_add_u32 s{S_L}, s{S_L}, 0x4000")
        self.dma_block(T + 1, 16, 0x4000, S_L)
        a("s_waitcnt vmcnt(16)")
        tr_qkv(4, 0)
        a("s_waitcnt vmcnt(0)")
        for nt in range(4):
            for ks in range(4):
                for jh in range(2):
                    off = (32 * ks + 16 * jh) * 128 + 32 * nt
                    d = A_WO(nt, ks) + 2 * jh
                    a(f"ds_read_b64_tr_b16 a[{d}:{d+1}], v{T+4} offset:{off}")
            a("s_waitcnt lgkmcnt(0)")
        a("s_barrier")

    def ktok_loads(self):
        out = []
        if self.opt.get("nokv"):
            return out
        for kt in range(2):
            for ks in range(4):
                d = V_KTOK + kt * 16 + ks * 4
                out.append(f"buffer_load_dwordx4 {vr(d,4)}, v{V_KT}, s[{SRD_KV}:{SRD_KV+3}], s{S_K0+kt} offen offset:{ks*1024}")
        return out

    def vtok_loads(self):
        out = []
        if self.opt.get("nokv"):
            return out
        for ks in range(4):
            for kt in range(2):
                d = V_VTOK + kt * 16 + ks * 4
                out.append(f"buffer_load_dwordx4 {vr(d,4)}, v{V_KT}, s[{SRD_KV}:{SRD_KV+3}], s{S_V0+kt} offen offset:{ks*1024}")
        return out

    def vo_tok(self, fill):
        a = self.a
        mf = []
        for ks in range(4):
            for nt in range(4):
                for kt in range(2):
                    d = V_VOTA + nt * 8 + kt * 4
                    c = "0" if ks == 0 else vr(d, 4)
                    mf.append(f"v_mfma_f32_16x16x32_bf16 {vr(d,4)}, {vr(V_VTOK+kt*16+ks*4,4)}, {ar(A_WO(nt,ks),4)}, {c}")
        for l in interleave(mf, fill, 0, 4):
            a(l)
        for nt in range(4):
            for kt in range(2):
                d = V_VOTA + nt * 8 + kt * 4
                o = V_VOT + nt * 4 + kt * 2
                a(f"v_cvt_pk_bf16_f32 v{o}, v{d}, v{d+1}")
                a(f"v_cvt_pk_bf16_f32 v{o+1}, v{d+2}, v{d+3}")

    def stage_a(self, j):
        a = self.a
        C = f"s[{SRD_COMM}:{SRD_COMM+3}]"
        R = V_PA
        prv = S_SL + (j + 3) % 4

        def issue():
            for q in range(4):
                a(f"buffer_load_dwordx4 {vr(R+4*q,4)}, v{V_ALD}, {C}, s{prv} offen offset:{q*1024} sc1")
        self.poll(issue, range(R, R + 16), 0)
        T = V_T
        D = V_XR
        a(f"v_mfma_f32_16x16x32_bf16 {vr(D,4)}, {vr(V_SA0,4)}, {vr(R,4)}, 0")
        a(f"v_mfma_f32_16x16x32_bf16 {vr(D,4)}, {vr(V_SA0,4)}, {vr(R+4,4)}, {vr(D,4)}")
        a(f"v_mfma_f32_16x16x32_bf16 {vr(D,4)}, {vr(V_SA1,4)}, {vr(R+8,4)}, {vr(D,4)}")
        a(f"v_mfma_f32_16x16x32_bf16 {vr(D,4)}, {vr(V_SA1,4)}, {vr(R+12,4)}, {vr(D,4)}")
        a(f"v_cvt_pk_bf16_f32 v{T}, v{D}, v{D+1}")
        a(f"v_cvt_pk_bf16_f32 v{T+1}, v{D+2}, v{D+3}")
        a(f"v_min_u32 v{T}, -2, v{T}")
        a(f"v_min_u32 v{T+1}, -2, v{T+1}")
        a(f"buffer_store_dwordx2 {vr(T,2)}, v{V_AST}, {C}, s{S_SL+j} offen{self.local}")
        a(f"buffer_store_dwordx2 {vr(V_SENT,2)}, v{V_AST}, {C}, s{S_SL+(j+2)%4} offen{self.local}")

    def fold(self, tau):
        a = self.a
        t1 = V_ACCB + tau * 4
        t2 = t1 + 4
        for r in range(4):
            a(f"v_permlane32_swap_b32 v{t1+r}, v{t2+r}")
        for r in range(4):
            a(f"v_add_f32 v{t1+r}, v{t1+r}, v{t2+r}")

    def stage_b(self, j):
        a = self.a
        C = f"s[{SRD_COMM}:{SRD_COMM+3}]"
        cur = S_SL + j

        def issue():
            for kq in range(4):
                a(f"buffer_load_dwordx4 {vr(V_MEM+4*kq,4)}, v{V_BLD}, {C}, s{cur} offen offset:{kq*1024} sc1")
        self.poll(issue, range(V_MEM, V_MEM + 16), 1)
        self.stamp(3)
        def sm(tau, kq):
            d = V_ACCB + tau * 4
            return f"v_smfmac_f32_16x16x64_bf16 {vr(d,4)}, {vr(V_MEM+4*kq,4)}, {ar(A_W(tau,kq),8)}, v{V_IDX}"

        def fold(tau):
            t1 = V_ACCB + tau * 4
            t2 = t1 + 4
            return ([f"v_permlane32_swap_b32 v{t1+r}, v{t2+r}" for r in range(4)] +
                    [f"v_add_f32 v{t1+r}, v{t1+r}, v{t2+r}" for r in range(4)])
        q = [sm(t, kq) for kq in range(4) for t in (0, 1)]
        k = [sm(t, kq) for kq in range(4) for t in (2, 3)]
        v = [sm(t, kq) for kq in range(4) for t in (4, 5)]
        for l in q:
            a(l)
        for l in k[:3]:
            a(l)
        fq = fold(0) + [f"ds_write_b128 v{V_RBW}, {vr(V_ACCB,4)}"]
        for l in interleave(k[3:] + v[:3], fq, 0, 1) if False else self.mix(k[3:] + v[:3], fq):
            a(l)
        fk = fold(2) + [f"ds_write_b128 v{V_RBW}, {vr(V_ACCB+8,4)} offset:4096"]
        for l in self.mix(v[3:], fk):
            a(l)
        for l in fold(4):
            a(l)
        a(f"ds_write_b128 v{V_RBW}, {vr(V_ACCB+16,4)} offset:8192")
        a("s_waitcnt lgkmcnt(0)")
        a("s_barrier")
        R = V_XR
        L3 = a.uid("b3")
        a(f"s_cmp_eq_u32 s{S_W}, 3")
        a(f"s_cbranch_scc1 {L3}")
        for q_ in range(4):
            a(f"ds_read_b128 {vr(R+4*q_,4)}, v{V_RBR} offset:{q_*1024}")
        a("s_waitcnt lgkmcnt(2)")
        for r in range(0, 4, 2):
            a(f"v_pk_add_f32 {vr(R+r,2)}, {vr(R+r,2)}, {vr(R+4+r,2)}")
        a("s_waitcnt lgkmcnt(0)")
        for r in range(0, 4, 2):
            a(f"v_pk_add_f32 {vr(R+8+r,2)}, {vr(R+8+r,2)}, {vr(R+12+r,2)}")
        for r in range(0, 4, 2):
            a(f"v_pk_add_f32 {vr(R+r,2)}, {vr(R+r,2)}, {vr(R+8+r,2)}")
        T = V_T
        a(f"v_cvt_pk_bf16_f32 v{T}, v{R}, v{R+1}")
        a(f"v_cvt_pk_bf16_f32 v{T+1}, v{R+2}, v{R+3}")
        D1, D2 = R + 4, R + 8
        a(f"v_mfma_f32_16x16x16_bf16 {vr(D1,4)}, {vr(T,2)}, {vr(V_SEL1,2)}, 0")
        a(f"v_mfma_f32_16x16x16_bf16 {vr(D2,4)}, {vr(T,2)}, {vr(V_SEL2,2)}, 0")
        H = V_HOLD
        a(f"v_cvt_pk_bf16_f32 v{H}, v{D1}, v{D1+1}")
        a(f"v_cvt_pk_bf16_f32 v{H+1}, v{D1+2}, v{D1+3}")
        a(f"v_cvt_pk_bf16_f32 v{H+2}, v{D2}, v{D2+1}")
        a(f"v_cvt_pk_bf16_f32 v{H+3}, v{D2+2}, v{D2+3}")
        for r in range(4):
            a(f"v_min_u32 v{H+r}, -2, v{H+r}")
        a(f"buffer_store_dwordx4 {vr(H,4)}, v{V_BST}, {C}, s{cur} offen{self.local}")
        a.label(L3)

    def stage_c(self, j):
        a = self.a
        C = f"s[{SRD_COMM}:{SRD_COMM+3}]"
        cur = S_SL + j
        T = V_T
        X = V_XR

        def issue_x():
            for ks in range(4):
                a(f"buffer_load_dwordx4 {vr(X+4*ks,4)}, v{V_CX}, {C}, s{cur} offen offset:{ks*1024} sc1")
        self.poll(issue_x, range(X, X + 16), 2)
        self.stamp(5)
        VM = V_VM

        def issue_v():
            for aa in range(2):
                a(f"buffer_load_dwordx4 {vr(VM+4*aa,4)}, v{V_CV}, {C}, s{cur} offen offset:{aa*1024} sc1")
        issue_v()
        S = V_S
        for ks in range(4):
            for kt in range(2):
                d = S + 4 * kt
                c = "0" if ks == 0 else vr(d, 4)
                a(f"v_mfma_f32_16x16x32_bf16 {vr(d,4)}, {vr(V_KTOK+kt*16+ks*4,4)}, {vr(X+4*ks,4)}, {c}")
            d = S + 8
            c = vr(V_NEG, 4) if ks == 0 else vr(d, 4)
            a(f"v_mfma_f32_16x16x32_bf16 {vr(d,4)}, {vr(X+4*ks,4)}, {vr(X+4*ks,4)}, {c}")
        self.poll(issue_v, range(VM, VM + 8), 3, pre_issued=True)
        self.stamp(6)
        for aa in range(2):
            for r in range(4):
                a(f"v_mov_b32_dpp v{VM+8+4*aa+r}, v{VM+4*aa+r} row_ror:8 row_mask:0xf bank_mask:0xf")
        mf = []
        for ks in range(4):
            aa = ks // 2
            src = VM + 4 * aa if ks % 2 == 1 else VM + 8 + 4 * aa
            for nt in range(4):
                d = V_VOMA + 4 * nt
                c = "0" if ks == 0 else vr(d, 4)
                mf.append(f"v_mfma_f32_16x16x32_bf16 {vr(d,4)}, {vr(src,4)}, {ar(A_WO(nt,ks),4)}, {c}")
        sm = []
        sm.append(f"v_max3_f32 v{T}, v{S}, v{S+1}, v{S+2}")
        sm.append(f"v_max3_f32 v{T+1}, v{S+3}, v{S+4}, v{S+5}")
        sm.append(f"v_max3_f32 v{T+2}, v{S+6}, v{S+7}, v{S+8}")
        sm.append(f"v_max3_f32 v{T+3}, v{S+9}, v{S+10}, v{S+11}")
        sm.append(f"v_max3_f32 v{T}, v{T}, v{T+1}, v{T+2}")
        sm.append(f"v_max_f32 v{T}, v{T}, v{T+3}")
        sm.append(f"v_mov_b32 v{T+1}, v{T}")
        sm.append(f"v_permlane32_swap_b32 v{T}, v{T+1}")
        sm.append(f"v_max_f32 v{T}, v{T}, v{T+1}")
        sm.append(f"v_mov_b32 v{T+1}, v{T}")
        sm.append(f"v_permlane16_swap_b32 v{T}, v{T+1}")
        sm.append(f"v_max_f32 v{T}, v{T}, v{T+1}")
        sm.append(f"v_mul_f32 v{T}, s{S_CSC}, v{T}")
        for q in range(12):
            sm.append(f"v_fma_f32 v{S+q}, v{S+q}, s{S_CSC}, -v{T}")
        for q in range(12):
            sm.append(f"v_exp_f32 v{S+q}, v{S+q}")
        for q in range(6):
            sm.append(f"v_cvt_pk_bf16_f32 v{V_P+q}, v{S+2*q}, v{S+2*q+1}")
        st = interleave(sm[:26], mf, 0, 2)
        nhead = len(st)
        tail = interleave(sm[26:], self.vtok_loads(), 0, 2)
        for l in st + tail:
            a(l)
        PT = vr(V_P, 4)
        PM = vr(V_P + 4, 2)
        a(f"v_mfma_f32_16x16x32_bf16 {vr(V_SUM,4)}, {vr(V_ONES,4)}, {PT}, 0")
        for nt in range(4):
            a(f"v_mfma_f32_16x16x32_bf16 {vr(V_OUT+4*nt,4)}, {vr(V_VOT+4*nt,4)}, {PT}, 0")
        for nt in range(4):
            d = V_VOMA + 4 * nt
            a(f"v_cvt_pk_bf16_f32 v{V_VOM+2*nt}, v{d}, v{d+1}")
            a(f"v_cvt_pk_bf16_f32 v{V_VOM+2*nt+1}, v{d+2}, v{d+3}")
        a(f"v_mfma_f32_16x16x16_bf16 {vr(V_SUM,4)}, {vr(V_ONES,2)}, {PM}, {vr(V_SUM,4)}")
        for nt in range(4):
            a(f"v_mfma_f32_16x16x16_bf16 {vr(V_OUT+4*nt,4)}, {vr(V_VOM+2*nt,2)}, {PM}, {vr(V_OUT+4*nt,4)}")
        a(f"v_rcp_f32 v{T}, v{V_SUM}")
        a(f"v_mov_b32_dpp v{T}, v{T} row_shr:8 row_mask:0xf bank_mask:0xc")
        for p in range(2):
            for r in range(4):
                d = V_OUT + 8 * p + r
                a(f"v_mul_f32 v{d}, v{d}, v{T}")
            for r in range(4):
                d = V_OUT + 8 * p + r
                a(f"v_mul_f32_dpp v{d}, v{d+4}, v{T} row_shr:8 row_mask:0xf bank_mask:0xc")
            a(f"ds_write_b128 v{V_OBW}, {vr(V_OUT+8*p,4)} offset:{p*1024}")
        a("s_waitcnt lgkmcnt(0)")
        a("s_barrier")
        self.stamp(7)
        L = a.uid("c1")
        a(f"s_cmp_ge_u32 s{S_W}, 2")
        a(f"s_cbranch_scc1 {L}")
        R = V_XR
        for q in range(4):
            a(f"ds_read_b128 {vr(R+4*q,4)}, v{V_OBR} offset:{q*2048}")
        a("s_waitcnt lgkmcnt(0)")
        for (x, y) in ((0, 1), (2, 3), (0, 2)):
            for r in range(4):
                a(f"v_add_f32 v{R+4*x+r}, v{R+4*x+r}, v{R+4*y+r}")
        H = R + 4
        a(f"v_cvt_pk_bf16_f32 v{H}, v{R}, v{R+1}")
        a(f"v_cvt_pk_bf16_f32 v{H+1}, v{R+2}, v{R+3}")
        a(f"v_min_u32 v{H}, -2, v{H}")
        a(f"v_min_u32 v{H+1}, -2, v{H+1}")
        a(f"v_mov_b32 v{H+2}, v{H}")
        a(f"v_mov_b32 v{H+3}, v{H+1}")
        a(f"v_permlane16_swap_b32 v{H}, v{H+2}")
        a(f"v_permlane16_swap_b32 v{H+1}, v{H+3}")
        a.label(L)
        a(f"buffer_store_dwordx4 {vr(V_XR+4,4)}, v{V_CST}, {C}, s{cur} offen sc1")

    def top(self, j):
        a = self.a
        C = f"s[{SRD_COMM}:{SRD_COMM+3}]"
        nxt = S_SL + (j + 1) % 4
        a(f"buffer_store_dwordx4 {vr(V_SENT,4)}, v{V_CST}, {C}, s{nxt} offen sc1")
        a(f"buffer_store_dwordx4 {vr(V_SENT,4)}, v{V_BST}, {C}, s{nxt} offen{self.local}")
        a(f"buffer_store_dwordx4 {vr(V_HOLD,4)}, v{V_KVM}, s[{SRD_KVM}:{SRD_KVM+3}], s{S_KVMO} offen")
        a(f"s_lshl_b32 s{S_K0}, s{S_STEP}, 18")
        a(f"s_add_u32 s{S_K1}, s{S_K0}, 0x20000")
        a(f"s_add_u32 s{S_V0}, s{S_K0}, {hex(0x1000000 + 0x40000)}")
        a(f"s_add_u32 s{S_V1}, s{S_V0}, 0x20000")
        a(f"s_add_u32 s{S_TOUCH}, s{S_K0}, 0x80000")
        a(f"s_lshl_b32 s{S_KVMO}, s{S_STEP}, 16")
        a("s_waitcnt vmcnt(4)")
        self.vo_tok(self.ktok_loads())
        Lt = a.uid("nt")
        a(f"s_cmp_lg_u32 s{S_W}, {self.WT}")
        a(f"s_cbranch_scc1 {Lt}")
        if not (self.opt.get("nokv") or self.opt.get("notouch")):
            a(f"buffer_load_dword v{V_T+11}, v{V_TOUCH}, s[{SRD_KV}:{SRD_KV+3}], s{S_TOUCH} offen")
        a.label(Lt)
        for r in range(24):
            a(f"v_mov_b32 v{V_ACCB+r}, 0")
        self.stamp(1)
        L1 = a.uid("noA")
        a(f"s_cmp_lg_u32 s{S_W}, {self.WA}")
        a(f"s_cbranch_scc1 {L1}")
        if j == 0:
            a(f"s_cmp_eq_u32 s{S_STEP}, 0")
            a(f"s_cbranch_scc1 {L1}")
        self.stage_a(j)
        a.label(L1)
        self.stamp(2)
        a("s_barrier")

    def emit(self):
        a = self.a
        n = self.name
        if self.timing:
            a("s_memrealtime s[92:93]")
        self.roles()
        self.consts()
        self.preload()
        if self.timing:
            a("s_memrealtime s[94:95]")
            a("s_memtime s[98:99]")
        a(f"s_mov_b32 s{S_STEP}, 0")
        a(f"s_mov_b32 s{S_SPIN}, 0x20000")
        a(f"s_mov_b32 s{S_ERR}, 0")
        for i in range(10):
            a(f"s_mov_b32 s{S_ACC+i}, 0")
        for i in range(5):
            a(f"s_mov_b32 s{S_FAIL+i}, 0")
        a(f"s_mov_b32 s{S_V0}, 0x1000000")
        a(f"s_mov_b32 s{S_V1}, 0x1020000")
        a(f"s_mov_b32 s{S_KVMO}, {hex(63*0x10000)}")
        for l in self.vtok_loads():
            a(l)
        a("s_waitcnt vmcnt(0)")
        if self.timing:
            self.stamp(0)
            a("s_waitcnt lgkmcnt(0)")
        a.label(f"{n}_loop")
        for j in range(4):
            self.top(j)
            self.stage_b(j)
            self.stamp(4)
            if j == (self.nsteps - 1) % 4:
                a(f"s_cmp_eq_u32 s{S_STEP}, {self.nsteps-1}")
                a(f"s_cbranch_scc1 {n}_fin")
            self.stage_c(j)
            self.stamp(8)
            self.stamp_flush(8)
            a(f"s_add_u32 s{S_STEP}, s{S_STEP}, 1")
        a(f"s_branch {n}_loop")
        a.label(f"{n}_fin")
        a(f"buffer_store_dwordx4 {vr(V_HOLD,4)}, v{V_KVM}, s[{SRD_KVM}:{SRD_KVM+3}], s{S_KVMO} offen")
        a.label(f"{n}_end")
        if self.timing:
            a("s_memrealtime s[96:97]")
            a("s_memtime s[100:101]")
            a("s_waitcnt lgkmcnt(0)")
            a("s_sub_u32 s96, s96, s94")
            a("s_sub_u32 s94, s94, s92")
            a("s_sub_u32 s100, s100, s98")
            srd(a, SRD_TMP, S_WS, DBGW, 0x20000)
            a(f"s_lshl_b32 s{S_A}, s{S_X}, 5")
            a(f"s_add_u32 s{S_A}, s{S_A}, s{S_C}")
            a(f"s_lshl_b32 s{S_A}, s{S_A}, 2")
            a(f"s_add_u32 s{S_A}, s{S_A}, s{S_W}")
            a(f"s_lshl_b32 s{S_A}, s{S_A}, 7")
            a(f"v_mov_b32 v{V_T}, s{S_A}")
            regs = [S_ACC + i for i in range(10)] + [S_ERR, S_STEP, S_SPIN] + [S_FAIL + i for i in range(5)] + [94, 96, 100]
            for i, reg in enumerate(regs):
                a(f"v_mov_b32 v{V_T+1}, s{reg}")
                a(f"buffer_store_dword v{V_T+1}, v{V_T}, s[{SRD_TMP}:{SRD_TMP+3}], 0 offen offset:{4*i}")
        a("s_waitcnt vmcnt(0)")
        a.label(f"{n}_exit")
        a("s_endpgm")
```

```python
from asmgen import Asm, vr, ar, sr

G_SRDW = 8
G_SRDA = 12
G_SRDO = 16
G_SRDR = 20
G_W = 24
G_WF, G_WT = 25, 26
G_F0B = 27
G_MT0 = 28
G_KS0 = 29
G_WK, G_AK = 30, 31
G_LW, G_LA = 32, 33
G_CNT = 34
G_T0, G_T1, G_T2, G_T3 = 35, 36, 37, 38
G_FO = 39
G_C0, G_C1 = 40, 42

V_TID = 0
V_LANE = 1
V_VA = 2
V_VB = 18
V_DW = 20
V_DA = 24
V_T = 28
V_ACC = 32
A_SPILL = 0
A_FRAG = 32


class Gemm:
    def __init__(self, a, name, MT, NT, KS, NS, nst, ldw, nks, mode="plain", lds0=0):
        self.a = a
        self.name = name
        self.MT, self.NT, self.KS, self.NS, self.nst = MT, NT, KS, NS, nst
        self.ldw = ldw
        self.nks = nks
        self.mode = mode
        self.NSM = MT // 4
        self.WB = self.NSM * KS * 8192
        self.AB = 2 * NT * KS * 1024
        self.STAGE = self.WB + self.AB
        self.PW = self.NSM * KS * 2
        self.PA = NT * KS // 2
        assert self.PW <= 4 and 1 <= self.PA <= 4
        self.P = self.PW + self.PA
        assert nst % NS == 0 and (NS * KS) % 2 == 0
        self.nva = 8 if (MT == 8 and mode == "plain") else 4
        self.nbank = (NS + 1) // 2
        assert self.nbank <= 2
        self.lds0 = lds0
        self.lds_bytes = lds0 + NS * self.STAGE
        self.fset = (MT + NT) * 4

    def acc(self, m, n):
        t = m * self.NT + n
        if t < 56:
            return ("v", V_ACC + 4 * t)
        return ("a", A_SPILL + 4 * (t - 56))

    def accs(self, m, n):
        k, r = self.acc(m, n)
        return f"{k}[{r}:{r+3}]"

    def fa(self, s, m):
        return A_FRAG + s * self.fset + 4 * m

    def fb(self, s, n):
        return A_FRAG + s * self.fset + 4 * self.MT + 4 * n

    def setup(self):
        a = self.a
        T = V_T
        KS = self.KS
        a(f"v_lshrrev_b32 v{T}, 2, v{V_LANE}")
        a(f"v_and_b32 v{T+1}, 7, v{T}")
        if self.nva == 4:
            a(f"s_lshl_b32 s{G_T0}, s{G_WF}, 2")
            a(f"v_xor_b32 v{T+1}, s{G_T0}, v{T+1}")
        a(f"v_lshlrev_b32 v{T}, 8, v{T}")
        a(f"v_and_b32 v{T+2}, 3, v{V_LANE}")
        a(f"v_lshl_add_u32 v{T}, v{T+2}, 3, v{T}")
        if self.nva == 8:
            a(f"s_mul_i32 s{G_T0}, s{G_WF}, {KS*8192}")
            a(f"s_add_u32 s{G_T0}, s{G_T0}, {self.lds0}")
        else:
            a(f"s_mov_b32 s{G_T0}, {self.lds0}")
        a(f"v_add_u32 v{T}, s{G_T0}, v{T}")
        for m in range(self.nva):
            a(f"v_xor_b32 v{T+2}, {m}, v{T+1}")
            a(f"v_lshl_add_u32 v{V_VA+m}, v{T+2}, 5, v{T}")
            if self.nbank > 1:
                a(f"v_add_u32 v{V_VA+8+m}, {2*self.STAGE}, v{V_VA+m}")
        a(f"s_mul_i32 s{G_T0}, s{G_WT}, {self.NT*KS*1024}")
        a(f"s_add_u32 s{G_T0}, s{G_T0}, {self.lds0+self.WB}")
        a(f"v_lshlrev_b32 v{T}, 4, v{V_LANE}")
        a(f"v_add_u32 v{V_VB}, s{G_T0}, v{T}")
        if self.nbank > 1:
            a(f"v_add_u32 v{V_VB+1}, {2*self.STAGE}, v{V_VB}")
        for i in range(self.PA):
            if KS == 1:
                a(f"s_mul_i32 s{G_T0}, s{G_W}, {self.PA}")
                a(f"s_add_u32 s{G_T0}, s{G_T0}, {i}")
                kk = 0
            else:
                assert self.PA % KS == 0
                a(f"s_mul_i32 s{G_T0}, s{G_W}, {self.PA // KS}")
                if i // KS:
                    a(f"s_add_u32 s{G_T0}, s{G_T0}, {i // KS}")
                kk = i % KS
            a(f"s_add_u32 s{G_T0}, s{G_T0}, s{G_MT0}")
            a(f"s_mul_i32 s{G_T0}, s{G_T0}, {self.nks}")
            a(f"s_add_u32 s{G_T0}, s{G_T0}, s{G_KS0}")
            if kk - i:
                a(f"s_add_i32 s{G_T0}, s{G_T0}, {kk - i}")
            a(f"s_lshl_b32 s{G_T0}, s{G_T0}, 10")
            a(f"v_add_u32 v{V_DA+i}, s{G_T0}, v{T}")
        a(f"s_lshl_b32 s{G_T0}, s{G_W}, 2")
        a(f"s_and_b32 s{G_T0}, s{G_T0}, {8*KS-1}")
        assert self.PW == 4
        a(f"s_lshl_b32 s{G_T1}, s{G_KS0}, 3")
        a(f"s_add_u32 s{G_T0}, s{G_T0}, s{G_T1}")
        a(f"s_mul_i32 s{G_T0}, s{G_T0}, {4*self.ldw}")
        a(f"s_add_u32 s{G_T0}, s{G_T0}, s{G_F0B}")
        a(f"v_lshrrev_b32 v{T}, 4, v{V_LANE}")
        a(f"s_mov_b32 s{G_T1}, {self.ldw}")
        a(f"v_mul_lo_u32 v{T+1}, v{T}, s{G_T1}")
        a(f"v_add_u32 v{T+1}, s{G_T0}, v{T+1}")
        a(f"v_and_b32 v{T+2}, 15, v{V_LANE}")
        for i in range(4):
            a(f"v_lshlrev_b32 v{T+3}, 1, v{T}")
            if i & 1:
                a(f"v_add_u32 v{T+3}, 8, v{T+3}")
            a(f"v_xor_b32 v{T+3}, v{T+3}, v{T+2}")
            a(f"v_lshl_add_u32 v{V_DW+i}, v{T+3}, 4, v{T+1}")
            if i:
                a(f"v_add_u32 v{V_DW+i}, {i*(4*self.ldw-1024)}, v{V_DW+i}")
        a(f"s_lshl_b32 s{G_LW}, s{G_W}, 12")
        if self.lds0:
            a(f"s_add_u32 s{G_LW}, s{G_LW}, {self.lds0}")
        a(f"s_mul_i32 s{G_LA}, s{G_W}, {self.PA*1024}")
        a(f"s_add_u32 s{G_LA}, s{G_LA}, {self.lds0+self.WB}")
        a(f"s_mov_b32 s{G_WK}, 0")
        a(f"s_mov_b32 s{G_AK}, 0")

    def dma(self, slot):
        out = []
        W = f"s[{G_SRDW}:{G_SRDW+3}]"
        A = f"s[{G_SRDA}:{G_SRDA+3}]"
        out.append(f"s_add_u32 m0, s{G_LW}, {slot*self.STAGE}")
        for i in range(self.PW):
            out.append(f"buffer_load_dwordx4 v{V_DW+i}, {W}, s{G_WK} offen offset:{i*1024} lds")
        out.append(f"s_add_u32 m0, s{G_LA}, {slot*self.STAGE}")
        for i in range(self.PA):
            out.append(f"buffer_load_dwordx4 v{V_DA+i}, {A}, s{G_AK} offen offset:{i*1024} lds")
        out.append(f"s_add_u32 s{G_WK}, s{G_WK}, {self.KS*32*self.ldw}")
        out.append(f"s_add_u32 s{G_AK}, s{G_AK}, {self.KS*1024}")
        return out

    def reads(self, slot, kk, s):
        out = []
        bank, so = slot // 2, (slot % 2) * self.STAGE
        for n in range(self.NT):
            off = so + (n * self.KS + kk) * 1024
            out.append(f"ds_read_b128 {ar(self.fb(s,n),4)}, v{V_VB+bank} offset:{off}")
        for m in range(self.MT):
            if self.mode == "glu":
                va, sm = m % 4, m // 4
            else:
                va, sm = m, 0
            for kh in range(2):
                off = so + sm * self.KS * 8192 + (32 * kk + 16 * kh) * 256
                assert off < 65536
                out.append(f"ds_read_b64_tr_b16 {ar(self.fa(s,m)+2*kh,2)}, v{V_VA+8*bank+va} offset:{off}")
        return out

    def mfmas(self, s):
        out = []
        for m in range(self.MT):
            for n in range(self.NT):
                c = self.accs(m, n)
                out.append(f"v_mfma_f32_16x16x32_bf16 {c}, {ar(self.fa(s,m),4)}, {ar(self.fb(s,n),4)}, {c}")
        return out

    def weave(self, mf, rd, dm):
        n = len(mf)
        slots = [[] for _ in range(n)]
        if rd:
            span = max(1, min(n, max((n * 5) // 8, (len(rd) + 1) // 2)))
            for i, r in enumerate(rd):
                slots[min(n - 1, (i * span) // len(rd))].append(r)
        if dm:
            for i, r in enumerate(dm):
                slots[min(n - 1, (i * n) // len(dm))].append(r)
        out = []
        for i in range(n):
            out.append(mf[i])
            out.extend(slots[i])
        return out

    def zero_acc(self):
        a = self.a
        for m in range(self.MT):
            for n in range(self.NT):
                k, r = self.acc(m, n)
                for j in range(4):
                    if k == "v":
                        a(f"v_mov_b32 v{r+j}, 0")
                    else:
                        a(f"v_accvgpr_write_b32 a{r+j}, 0")

    def substep(self, st_slot, kk, u, steady, remain):
        a = self.a
        KS, NS, P = self.KS, self.NS, self.P
        s = u % 2
        last_kk = kk == KS - 1
        rd, dm = [], []
        if last_kk:
            if remain > 0:
                infl = min(remain - 1, NS - 2)
                a(f"s_waitcnt vmcnt({infl*P}) lgkmcnt(0)")
                a("s_barrier")
                rd = self.reads((st_slot + 1) % NS, 0, 1 - s)
                if steady:
                    dm = self.dma(st_slot)
            else:
                a("s_waitcnt lgkmcnt(0)")
        else:
            a("s_waitcnt lgkmcnt(0)")
            rd = self.reads(st_slot, kk + 1, 1 - s)
        for l in self.weave(self.mfmas(s), rd, dm):
            a(l)

    def mainloop(self, during_prologue=None):
        a = self.a
        NS, KS, P = self.NS, self.KS, self.P
        for sl in range(NS):
            for l in self.dma(sl):
                a(l)
        if during_prologue:
            during_prologue()
        self.zero_acc()
        a(f"s_waitcnt vmcnt({(NS-1)*P})")
        a("s_barrier")
        for l in self.reads(0, 0, 0):
            a(l)
        ngrp = self.nst // NS - 1
        if ngrp > 0:
            L = a.uid(self.name + "_loop")
            a(f"s_mov_b32 s{G_CNT}, {ngrp}")
            a.label(L)
            u = 0
            for sl in range(NS):
                for kk in range(KS):
                    self.substep(sl, kk, u, True, 99)
                    u += 1
            a(f"s_sub_u32 s{G_CNT}, s{G_CNT}, 1")
            a(f"s_cmp_lg_u32 s{G_CNT}, 0")
            a(f"s_cbranch_scc1 {L}")
        u = 0
        for sl in range(NS):
            for kk in range(KS):
                self.substep(sl, kk, u, False, NS - 1 - sl)
                u += 1

    def rd_acc(self, m, n, tmp):
        k, r = self.acc(m, n)
        if k == "v":
            return r
        for j in range(4):
            self.a(f"v_accvgpr_read_b32 v{tmp+j}, a{r+j}")
        return tmp

    def out_addr_fm(self, vdst, nks_out):
        a = self.a
        a(f"s_mul_i32 s{G_T0}, s{G_WT}, {self.NT}")
        a(f"s_add_u32 s{G_T0}, s{G_T0}, s{G_MT0}")
        a(f"s_mul_i32 s{G_T0}, s{G_T0}, {nks_out}")
        a(f"s_lshr_b32 s{G_T1}, s{G_FO}, 5")
        a(f"s_add_u32 s{G_T0}, s{G_T0}, s{G_T1}")
        a(f"s_lshl_b32 s{G_T0}, s{G_T0}, 10")
        a(f"v_lshlrev_b32 v{vdst}, 4, v{V_LANE}")
        a(f"v_add_u32 v{vdst}, s{G_T0}, v{vdst}")

    def epi_fm(self, nks_out, flags=""):
        a = self.a
        O = f"s[{G_SRDO}:{G_SRDO+3}]"
        VO = V_VA
        self.out_addr_fm(VO, nks_out)
        tmps = [4, 8, 12, 16, 20, 24]
        ti = 0
        TA, TB = V_T, V_VB
        for n in range(self.NT):
            a(f"s_mov_b32 s{G_T2}, {n*nks_out*1024}")
            for p in range(self.MT // 2):
                r0 = self.rd_acc(2 * p, n, V_T)
                k1, _ = self.acc(2 * p + 1, n)
                d = tmps[ti % len(tmps)]
                ti += 1
                a(f"v_cvt_pk_bf16_f32 v{d}, v{r0}, v{r0+1}")
                a(f"v_cvt_pk_bf16_f32 v{d+1}, v{r0+2}, v{r0+3}")
                r1 = self.rd_acc(2 * p + 1, n, V_T)
                a(f"v_cvt_pk_bf16_f32 v{d+2}, v{r1}, v{r1+1}")
                a(f"v_cvt_pk_bf16_f32 v{d+3}, v{r1+2}, v{r1+3}")
                a(f"buffer_store_dwordx4 {vr(d,4)}, v{VO}, {O}, s{G_T2} offen offset:{p*1024}{flags}")

    def epi_glu(self, nks_out, flags=""):
        a = self.a
        O = f"s[{G_SRDO}:{G_SRDO+3}]"
        VO = V_VA
        self.out_addr_fm(VO, nks_out)
        a(f"s_mov_b32 s{G_C0}, 0xbfb8aa3b")
        a(f"s_mov_b32 s{G_C0+1}, 0xbfb8aa3b")
        a(f"s_mov_b32 s{G_C1}, 1.0")
        a(f"s_mov_b32 s{G_C1+1}, 1.0")
        tmps = [4, 8, 12]
        E = 16
        ti = 0
        for n in range(self.NT):
            a(f"s_mov_b32 s{G_T2}, {n*nks_out*1024}")
            for p in range(2):
                d = tmps[ti % len(tmps)]
                ti += 1
                for h in range(2):
                    m = 2 * p + h
                    g = self.rd_acc(m, n, 24)
                    u = self.rd_acc(m + 4, n, 28)
                    e = E + 4 * h
                    for j in (0, 2):
                        a(f"v_pk_mul_f32 {vr(e+j,2)}, {vr(g+j,2)}, s[{G_C0}:{G_C0+1}]")
                    for j in range(4):
                        a(f"v_exp_f32 v{e+j}, v{e+j}")
                    for j in (0, 2):
                        a(f"v_pk_mul_f32 {vr(g+j,2)}, {vr(g+j,2)}, {vr(u+j,2)}")
                    for j in (0, 2):
                        a(f"v_pk_add_f32 {vr(e+j,2)}, {vr(e+j,2)}, s[{G_C1}:{G_C1+1}]")
                    for j in range(4):
                        a(f"v_rcp_f32 v{e+j}, v{e+j}")
                    for j in (0, 2):
                        a(f"v_pk_mul_f32 {vr(g+j,2)}, {vr(g+j,2)}, {vr(e+j,2)}")
                    a(f"v_cvt_pk_bf16_f32 v{d+2*h}, v{g}, v{g+1}")
                    a(f"v_cvt_pk_bf16_f32 v{d+2*h+1}, v{g+2}, v{g+3}")
                a(f"buffer_store_dwordx4 {vr(d,4)}, v{VO}, {O}, s{G_T2} offen offset:{p*1024}{flags}")

    def free_v(self):
        return V_ACC + 4 * min(56, self.MT * self.NT)

    def pre_resid_rowmajor(self):
        a = self.a
        R = self.free_v()
        self.RES = R
        VX = R + self.MT * self.NT * 2
        a(f"s_mul_i32 s{G_T0}, s{G_WT}, {self.NT}")
        a(f"s_add_u32 s{G_T0}, s{G_T0}, s{G_MT0}")
        a(f"s_lshl_b32 s{G_T0}, s{G_T0}, 15")
        a(f"s_lshl_b32 s{G_T1}, s{G_FO}, 1")
        a(f"s_add_u32 s{G_T0}, s{G_T0}, s{G_T1}")
        a(f"v_and_b32 v{VX}, 15, v{V_LANE}")
        a(f"v_lshlrev_b32 v{VX}, 11, v{VX}")
        a(f"v_lshrrev_b32 v{VX+1}, 4, v{V_LANE}")
        a(f"v_lshl_add_u32 v{VX}, v{VX+1}, 3, v{VX}")
        a(f"v_add_u32 v{VX}, s{G_T0}, v{VX}")
        for n in range(self.NT):
            a(f"s_mov_b32 s{G_T2}, {n*16*2048}")
            for m in range(self.MT):
                d = R + (n * self.MT + m) * 2
                a(f"buffer_load_dwordx2 {vr(d,2)}, v{VX}, s[{G_SRDR}:{G_SRDR+3}], s{G_T2} offen offset:{m*32}")
        return self.MT * self.NT

    def epi_resid_fm(self, nks_out, flags=""):
        a = self.a
        O = f"s[{G_SRDO}:{G_SRDO+3}]"
        VO = V_VA
        self.out_addr_fm(VO, nks_out)
        T = 4
        a(f"s_mov_b32 s{G_T3}, 0xffff0000")
        for n in range(self.NT):
            a(f"s_mov_b32 s{G_T2}, {n*nks_out*1024}")
            for p in range(self.MT // 2):
                d = 12 + 4 * ((n * self.MT // 2 + p) % 3)
                for h in range(2):
                    m = 2 * p + h
                    _, r = self.acc(m, n)
                    x = self.RES + (n * self.MT + m) * 2
                    a(f"v_lshlrev_b32 v{T}, 16, v{x}")
                    a(f"v_and_b32 v{T+1}, s{G_T3}, v{x}")
                    a(f"v_lshlrev_b32 v{T+2}, 16, v{x+1}")
                    a(f"v_and_b32 v{T+3}, s{G_T3}, v{x+1}")
                    for j in range(4):
                        a(f"v_add_f32 v{r+j}, v{r+j}, v{T+j}")
                    a(f"v_cvt_pk_bf16_f32 v{d+2*h}, v{r}, v{r+1}")
                    a(f"v_cvt_pk_bf16_f32 v{d+2*h+1}, v{r+2}, v{r+3}")
                a(f"buffer_store_dwordx4 {vr(d,4)}, v{VO}, {O}, s{G_T2} offen offset:{p*1024}{flags}")

    def pre_resid_fm(self, nks_res):
        a = self.a
        R = self.free_v()
        self.RES = R
        VX = R + self.MT * self.NT * 2
        self.out_addr_fm(VX, nks_res)
        for n in range(self.NT):
            a(f"s_mov_b32 s{G_T2}, {n*nks_res*1024}")
            for p in range(self.MT // 2):
                d = R + (n * (self.MT // 2) + p) * 4
                a(f"buffer_load_dwordx4 {vr(d,4)}, v{VX}, s[{G_SRDR}:{G_SRDR+3}], s{G_T2} offen offset:{p*1024}")
        return self.MT * self.NT // 2

    def epi_resid_rowmajor(self, flags=""):
        a = self.a
        O = f"s[{G_SRDO}:{G_SRDO+3}]"
        VO = V_VA
        a(f"s_mul_i32 s{G_T0}, s{G_WT}, {self.NT}")
        a(f"s_add_u32 s{G_T0}, s{G_T0}, s{G_MT0}")
        a(f"s_lshl_b32 s{G_T0}, s{G_T0}, 15")
        a(f"s_lshl_b32 s{G_T1}, s{G_FO}, 1")
        a(f"s_add_u32 s{G_T0}, s{G_T0}, s{G_T1}")
        a(f"v_and_b32 v{VO}, 15, v{V_LANE}")
        a(f"v_lshlrev_b32 v{VO}, 11, v{VO}")
        a(f"v_lshrrev_b32 v{VO+1}, 4, v{V_LANE}")
        a(f"v_lshl_add_u32 v{VO}, v{VO+1}, 4, v{VO}")
        a(f"v_add_u32 v{VO}, s{G_T0}, v{VO}")
        T = 4
        a(f"s_mov_b32 s{G_T3}, 0xffff0000")
        for n in range(self.NT):
            a(f"s_mov_b32 s{G_T2}, {n*16*2048}")
            for p in range(self.MT // 2):
                d = 12 + 4 * ((n * self.MT // 2 + p) % 3)
                x = self.RES + (n * (self.MT // 2) + p) * 4
                for h in range(2):
                    m = 2 * p + h
                    _, r = self.acc(m, n)
                    a(f"v_lshlrev_b32 v{T}, 16, v{x+2*h}")
                    a(f"v_and_b32 v{T+1}, s{G_T3}, v{x+2*h}")
                    a(f"v_lshlrev_b32 v{T+2}, 16, v{x+2*h+1}")
                    a(f"v_and_b32 v{T+3}, s{G_T3}, v{x+2*h+1}")
                    for j in range(4):
                        a(f"v_add_f32 v{r+j}, v{r+j}, v{T+j}")
                    a(f"v_cvt_pk_bf16_f32 v{d+2*h}, v{r}, v{r+1}")
                    a(f"v_cvt_pk_bf16_f32 v{d+2*h+1}, v{r+2}, v{r+3}")
                a(f"v_permlane32_swap_b32 v{d}, v{d+2}")
                a(f"v_permlane32_swap_b32 v{d+1}, v{d+3}")
                a(f"v_permlane16_swap_b32 v{d}, v{d+2}")
                a(f"v_permlane16_swap_b32 v{d+1}, v{d+3}")
                a(f"buffer_store_dwordx4 {vr(d,4)}, v{VO}, {O}, s{G_T2} offen offset:{p*64}{flags}")
```

```python
from asmgen import Asm, vr, ar, sr
from layout import *
import gemm as G
from gemm import Gemm


def srd(a, s, plo, off, size):
    if off:
        a(f"s_add_u32 s{s}, s{plo}, {hex(off)}")
        a(f"s_addc_u32 s{s+1}, s{plo+1}, 0")
    else:
        a(f"s_mov_b32 s{s}, s{plo}")
        a(f"s_mov_b32 s{s+1}, s{plo+1}")
    a(f"s_mov_b32 s{s+2}, {hex(size)}")
    a(f"s_mov_b32 s{s+3}, 0x20000")


def head(a, name):
    a(f".globl {name}\n.p2align 8\n.type {name},@function")
    a.label(name)


def kernel_desc(name, vgpr=512, accum=256, sgpr=102):
    return f""".amdhsa_kernel {name}
  .amdhsa_next_free_vgpr {vgpr}
  .amdhsa_next_free_sgpr {sgpr}
  .amdhsa_accum_offset {accum}
  .amdhsa_group_segment_fixed_size 0
  .amdhsa_kernarg_size 112
  .amdhsa_user_sgpr_count 2
  .amdhsa_user_sgpr_kernarg_segment_ptr 1
  .amdhsa_system_sgpr_workgroup_id_x 1
.end_amdhsa_kernel
"""


def ln_kernel(a, name, first):
    head(a, name)
    X = 16
    F = 48
    T = 4
    a("s_cmp_ge_u32 s2, 128")
    a(f"s_cbranch_scc1 {name}_exit")
    a(f"s_load_dwordx2 s[4:5], s[0:1], {KA_WS}")
    if first:
        a(f"s_load_dwordx2 s[6:7], s[0:1], {KA_X}")
        a(f"s_load_dwordx2 s[24:25], s[0:1], {KA_MEM0}")
    a("v_lshrrev_b32 v1, 6, v0")
    a("v_readfirstlane_b32 s20, v1")
    a("v_and_b32 v1, 63, v0")
    a("v_and_b32 v2, 15, v1")
    a("v_lshrrev_b32 v3, 4, v1")
    a("s_waitcnt lgkmcnt(0)")
    if first:
        srd(a, 8, 6, 0, 2048 * 2048)
        srd(a, 12, 4, XN, 0x400000)
        a("s_lshl_b32 s21, s2, 15")
        a("s_lshl_b32 s22, s20, 9")
        a("s_add_u32 s21, s21, s22")
        a(f"v_lshlrev_b32 v{T}, 11, v2")
        a(f"v_lshl_add_u32 v{T}, v3, 4, v{T}")
        a(f"v_add_u32 v{T}, s21, v{T}")
        for k in range(8):
            a(f"buffer_load_dwordx4 {vr(X+4*k,4)}, v{T}, s[8:11], 0 offen offset:{k*64}")
        srd(a, 16, 4, COMM, 4 * SLOT)
        srd(a, 28, 24, 0, 8 * 2048)
        a("s_lshl_b32 s21, s2, 12")
        a(f"v_lshlrev_b32 v{T+1}, 4, v0")
        a(f"v_add_u32 v{T+1}, s21, v{T+1}")
        for r in range(4):
            a(f"v_mov_b32 v{8+r}, -1")
        for sl in range(1, 4):
            a(f"s_mov_b32 s21, {hex(sl*SLOT)}")
            a(f"buffer_store_dwordx4 {vr(8,4)}, v{T+1}, s[16:19], s21 offen")
        a(f"s_lshr_b32 s21, s2, 4")
        L = a.uid("nomem")
        a(f"s_cmp_lg_u32 s21, {C_MEM >> 16}")
        a(f"s_cbranch_scc1 {L}")
        a("s_lshl_b32 s21, s2, 2")
        a("s_add_u32 s21, s21, s20")
        a("s_and_b32 s21, s21, 15")
        a("s_lshl_b32 s21, s21, 7")
        a(f"v_and_b32 v{T+2}, 7, v1")
        a(f"v_lshlrev_b32 v{T+2}, 11, v{T+2}")
        a(f"v_lshrrev_b32 v{T+3}, 3, v1")
        a(f"v_lshl_add_u32 v{T+2}, v{T+3}, 4, v{T+2}")
        a(f"v_add_u32 v{T+2}, s21, v{T+2}")
        a(f"buffer_load_dwordx4 {vr(12,4)}, v{T+2}, s[28:31], 0 offen")
        a("s_waitcnt vmcnt(0)")
        for r in range(4):
            a(f"v_min_u32 v{8+r}, -2, v{12+r}")
        a.label(L)
        a(f"buffer_store_dwordx4 {vr(8,4)}, v{T+1}, s[16:19], 0 offen")
        L2 = a.uid("nocnt")
        a("s_cmp_lg_u32 s2, 0")
        a(f"s_cbranch_scc1 {L2}")
        srd(a, 16, 4, CNT, 4096)
        for r in range(4):
            a(f"v_mov_b32 v{12+r}, 0")
        a(f"v_lshlrev_b32 v{T+2}, 4, v0")
        a(f"buffer_store_dwordx4 {vr(12,4)}, v{T+2}, s[16:19], 0 offen")
        a.label(L2)
        a("s_waitcnt vmcnt(0)")
        for k in range(8):
            d = X + 4 * k
            a(f"v_permlane16_swap_b32 v{d}, v{d+2}")
            a(f"v_permlane16_swap_b32 v{d+1}, v{d+3}")
            a(f"v_permlane32_swap_b32 v{d}, v{d+2}")
            a(f"v_permlane32_swap_b32 v{d+1}, v{d+3}")
    else:
        srd(a, 8, 4, HB, 0x400000)
        srd(a, 12, 4, HN, 0x400000)
        a("s_lshl_b32 s21, s2, 15")
        a("s_lshl_b32 s22, s20, 13")
        a("s_add_u32 s21, s21, s22")
        a(f"v_lshlrev_b32 v{T}, 4, v1")
        a(f"v_add_u32 v{T}, s21, v{T}")
        for k in range(8):
            a(f"s_mov_b32 s22, {k*1024}")
            a(f"buffer_load_dwordx4 {vr(X+4*k,4)}, v{T}, s[8:11], s22 offen")
        a("s_waitcnt vmcnt(0)")
    ln_body(a, X, F, T)
    a("s_lshl_b32 s21, s2, 15")
    a("s_lshl_b32 s22, s20, 13")
    a("s_add_u32 s21, s21, s22")
    a(f"v_lshlrev_b32 v{T}, 4, v1")
    a(f"v_add_u32 v{T}, s21, v{T}")
    for k in range(8):
        a(f"s_mov_b32 s22, {k*1024}")
        a(f"buffer_store_dwordx4 {vr(X+4*k,4)}, v{T}, s[12:15], s22 offen")
    a("s_waitcnt vmcnt(0)")
    a.label(f"{name}_exit")
    a("s_endpgm")


def ln_body(a, X, F, T, lds=0):
    a("s_mov_b32 s23, 0xffff0000")
    for i in range(32):
        a(f"v_lshlrev_b32 v{F+2*i}, 16, v{X+i}")
        a(f"v_and_b32 v{F+2*i+1}, s23, v{X+i}")
    a("s_lshl_b32 s22, s20, 2")
    a(f"v_lshlrev_b32 v{T+1}, 4, v2")
    if lds:
        a(f"v_add_u32 v{T+1}, {lds}, v{T+1}")
    a(f"v_add_u32 v{T+2}, s22, v{T+1}")

    def reduce(phase, sq):
        acc = [8, 9, 10, 11]
        for i in range(64):
            r = acc[i % 4]
            if i < 4:
                if sq:
                    a(f"v_mul_f32 v{r}, v{F+i}, v{F+i}")
                else:
                    a(f"v_mov_b32 v{r}, v{F+i}")
            else:
                if sq:
                    a(f"v_fma_f32 v{r}, v{F+i}, v{F+i}, v{r}")
                else:
                    a(f"v_add_f32 v{r}, v{r}, v{F+i}")
        a("v_add_f32 v8, v8, v9")
        a("v_add_f32 v10, v10, v11")
        a("v_add_f32 v8, v8, v10")
        a("v_mov_b32 v9, v8")
        a("v_permlane32_swap_b32 v8, v9")
        a("v_add_f32 v8, v8, v9")
        a("v_mov_b32 v9, v8")
        a("v_permlane16_swap_b32 v8, v9")
        a("v_add_f32 v8, v8, v9")
        a(f"ds_write_b32 v{T+2}, v8 offset:{phase*256}")
        a("s_waitcnt lgkmcnt(0)")
        a("s_barrier")
        a(f"ds_read_b128 v[8:11], v{T+1} offset:{phase*256}")
        a("s_waitcnt lgkmcnt(0)")
        a("v_add_f32 v8, v8, v9")
        a("v_add_f32 v10, v10, v11")
        a("v_add_f32 v8, v8, v10")
        a("v_mul_f32 v8, 0x3a800000, v8")

    reduce(0, False)
    for i in range(64):
        a(f"v_sub_f32 v{F+i}, v{F+i}, v8")
    reduce(1, True)
    a("v_add_f32 v8, 0x3727c5ac, v8")
    a("v_rsq_f32 v8, v8")
    for i in range(64):
        a(f"v_mul_f32 v{F+i}, v{F+i}, v8")
    for i in range(32):
        a(f"v_cvt_pk_bf16_f32 v{X+i}, v{F+2*i}, v{F+2*i+1}")


def gemm_head(a, name, ntask):
    head(a, name)
    a(f"s_cmp_ge_u32 s2, {ntask}")
    a(f"s_cbranch_scc1 {name}_exit")
    a(f"s_load_dwordx2 s[4:5], s[0:1], {KA_WS}")
    a("v_lshrrev_b32 v2, 6, v0")
    a(f"v_readfirstlane_b32 s{G.G_W}, v2")
    a(f"v_and_b32 v{G.V_LANE}, 63, v0")
    a(f"s_and_b32 s{G.G_WF}, s{G.G_W}, 1")
    a(f"s_lshr_b32 s{G.G_WT}, s{G.G_W}, 1")
    a("s_and_b32 s44, s2, 7")
    a("s_lshr_b32 s45, s2, 3")


def gemm_tail(a, name):
    a("s_waitcnt vmcnt(0)")
    a.label(f"{name}_exit")
    a("s_endpgm")


def kv_kernel(a, name):
    g = Gemm(a, name, 8, 8, 1, 4, 32, 8192, 32)
    gemm_head(a, name, 256)
    a("s_lshl_b32 s46, s44, 2")
    a("s_and_b32 s47, s45, 3")
    a("s_add_u32 s46, s46, s47")
    a("s_lshr_b32 s47, s45, 2")
    a("s_lshr_b32 s48, s46, 4")
    a("s_lshl_b32 s49, s48, 3")
    a(f"s_add_u32 s50, s0, s49")
    a(f"s_addc_u32 s51, s1, 0")
    a(f"s_load_dwordx2 s[6:7], s[50:51], {KA_WK}")
    a("s_and_b32 s46, s46, 15")
    qkv_common(a, g, 16, "s48", KT)
    g.setup()
    g.mainloop()
    g.epi_fm(128)
    gemm_tail(a, name)
    return g.lds_bytes


def q_kernel(a, name):
    g = Gemm(a, name, 8, 4, 1, 4, 32, 8192, 32)
    gemm_head(a, name, 256)
    a("s_and_b32 s46, s44, 3")
    a("s_lshl_b32 s46, s46, 2")
    a("s_and_b32 s47, s45, 3")
    a("s_add_u32 s46, s46, s47")
    a("s_lshr_b32 s47, s44, 2")
    a("s_lshl_b32 s47, s47, 3")
    a("s_lshr_b32 s48, s45, 2")
    a("s_add_u32 s47, s47, s48")
    a(f"s_load_dwordx2 s[6:7], s[0:1], {KA_WQ}")
    a("s_mov_b32 s48, 0")
    qkv_common(a, g, 8, "s48", QT)
    g.setup()
    g.mainloop()
    g.epi_fm(128)
    gemm_tail(a, name)
    return g.lds_bytes


def qkv_common(a, g, mt_per_tile, smat, obase):
    a("s_waitcnt lgkmcnt(0)")
    srd(a, G.G_SRDW, 6, 0, 0x800000)
    srd(a, G.G_SRDA, 4, XN, 0x400000)
    a(f"s_lshl_b32 s49, {smat}, 24")
    a(f"s_add_u32 s50, s4, s49")
    a(f"s_addc_u32 s51, s5, 0")
    srd(a, G.G_SRDO, 50, obase, 0x1000000)
    a(f"s_mul_i32 s{G.G_MT0}, s47, {mt_per_tile}")
    a(f"s_mov_b32 s{G.G_KS0}, 0")
    a(f"s_lshl_b32 s49, s46, 8")
    a(f"s_lshr_b32 s50, s{G.G_W}, 1")
    a(f"s_lshl_b32 s50, s50, 7")
    a(f"s_add_u32 s50, s50, s49")
    a(f"s_lshl_b32 s{G.G_F0B}, s50, 1")
    a(f"s_lshl_b32 s50, s{G.G_WF}, 7")
    a(f"s_add_u32 s{G.G_FO}, s50, s49")


def small_map(a):
    a("s_and_b32 s46, s44, 1")
    a("s_lshl_b32 s46, s46, 2")
    a("s_and_b32 s47, s45, 3")
    a("s_add_u32 s46, s46, s47")
    a("s_lshr_b32 s47, s44, 1")
    a("s_lshl_b32 s47, s47, 3")
    a("s_lshr_b32 s48, s45, 2")
    a("s_add_u32 s47, s47, s48")


def small_common(a):
    a(f"s_lshl_b32 s{G.G_MT0}, s47, 2")
    a(f"s_mov_b32 s{G.G_KS0}, 0")
    a(f"s_lshl_b32 s{G.G_F0B}, s46, 8")
    a(f"s_lshl_b32 s49, s46, 7")
    a(f"s_lshl_b32 s50, s{G.G_WF}, 6")
    a(f"s_add_u32 s{G.G_FO}, s49, s50")


def op_kernel(a, name):
    g = Gemm(a, name, 4, 2, 2, 4, 64, 2048, 128)
    gemm_head(a, name, 256)
    small_map(a)
    a(f"s_load_dwordx2 s[6:7], s[0:1], {KA_WO}")
    a(f"s_load_dwordx2 s[50:51], s[0:1], {KA_X}")
    a("s_waitcnt lgkmcnt(0)")
    srd(a, G.G_SRDW, 6, 0, 0x800000)
    srd(a, G.G_SRDA, 4, OF, 0x1000000)
    srd(a, G.G_SRDO, 4, HB, 0x400000)
    srd(a, G.G_SRDR, 50, 0, 0x400000)
    small_common(a)
    g.pre_resid_rowmajor()
    g.setup()
    g.mainloop()
    g.epi_resid_fm(32)
    gemm_tail(a, name)
    return g.lds_bytes


def f1_kernel(a, name):
    g = Gemm(a, name, 8, 8, 1, 4, 32, 7168, 32, mode="glu")
    gemm_head(a, name, 256)
    a("s_cmp_ge_u32 s45, 28")
    a(f"s_cbranch_scc1 {name}_exit")
    a("s_mul_i32 s48, s45, 37")
    a("s_lshr_b32 s48, s48, 8")
    a("s_mul_i32 s47, s48, 7")
    a("s_sub_u32 s47, s45, s47")
    a("s_and_b32 s46, s44, 3")
    a("s_mul_i32 s46, s46, 7")
    a("s_add_u32 s46, s46, s47")
    a("s_lshr_b32 s47, s44, 2")
    a("s_lshl_b32 s47, s47, 2")
    a("s_add_u32 s47, s47, s48")
    a(f"s_lshr_b32 s48, s{G.G_W}, 1")
    a("s_lshl_b32 s48, s48, 3")
    a("s_add_u32 s50, s0, s48")
    a("s_addc_u32 s51, s1, 0")
    a(f"s_load_dwordx2 s[6:7], s[50:51], {KA_W1}")
    a("s_waitcnt lgkmcnt(0)")
    srd(a, G.G_SRDW, 6, 0, 1024 * 7168)
    srd(a, G.G_SRDA, 4, HN, 0x400000)
    srd(a, G.G_SRDO, 4, GF, 128 * 112 * 1024)
    a(f"s_lshl_b32 s{G.G_MT0}, s47, 4")
    a(f"s_mov_b32 s{G.G_KS0}, 0")
    a(f"s_lshl_b32 s{G.G_F0B}, s46, 8")
    a(f"s_lshl_b32 s49, s46, 7")
    a(f"s_lshl_b32 s50, s{G.G_WF}, 6")
    a(f"s_add_u32 s{G.G_FO}, s49, s50")
    g.setup()
    g.mainloop()
    g.epi_glu(112)
    gemm_tail(a, name)
    return g.lds_bytes


def f2_kernel(a, name):
    g = Gemm(a, name, 4, 2, 2, 4, 56, 2048, 112)
    gemm_head(a, name, 256)
    small_map(a)
    a(f"s_load_dwordx2 s[6:7], s[0:1], {KA_W2}")
    a(f"s_load_dwordx2 s[50:51], s[0:1], {KA_OUT}")
    a("s_waitcnt lgkmcnt(0)")
    srd(a, G.G_SRDW, 6, 0, 3584 * 2048)
    srd(a, G.G_SRDA, 4, GF, 128 * 112 * 1024)
    srd(a, G.G_SRDO, 50, 0, 0x400000)
    srd(a, G.G_SRDR, 4, HB, 0x400000)
    small_common(a)
    g.pre_resid_fm(32)
    g.setup()
    g.mainloop()
    g.epi_resid_rowmajor()
    gemm_tail(a, name)
    return g.lds_bytes


def attn_consts(a, SEL, ONES, CAUS, MEMM, T, lane="v1"):
    a(f"v_and_b32 v2, 15, {lane}")
    a(f"v_lshrrev_b32 v3, 4, {lane}")
    a(f"v_lshlrev_b32 v{T}, 2, v3")
    a(f"v_sub_u32 v{T+1}, v2, v{T}")
    a(f"v_mov_b32 v{T+2}, 0x3f80")
    a(f"v_mov_b32 v{T+3}, 0x3f800000")
    for r in range(2):
        a(f"v_cmp_eq_u32 vcc, {2*r}, v{T+1}")
        a(f"v_cndmask_b32 v{SEL+r}, 0, v{T+2}, vcc")
        a(f"v_cmp_eq_u32 vcc, {2*r+1}, v{T+1}")
        a(f"v_cndmask_b32 v{SEL+r}, v{SEL+r}, v{T+3}, vcc")
    a(f"v_mov_b32 v{T+2}, 0xff000000")
    for r in range(4):
        a(f"v_mov_b32 v{ONES+r}, 0x3f803f80")
        a(f"v_cmp_gt_i32 vcc, {r}, v{T+1}")
        a(f"v_cndmask_b32 v{CAUS+r}, 0, v{T+2}, vcc")
        a(f"v_cmp_lt_u32 vcc, 1, v3")
        a(f"v_cndmask_b32 v{MEMM+r}, 0, v{T+2}, vcc")


def attn_unit(a, R, sK, sM, flags=""):
    Q, K, V, KM, VM = R["Q"], R["K"], R["V"], R["KM"], R["VM"]
    S, VT, VMT, P, O, T = R["S"], R["VT"], R["VMT"], R["P"], R["O"], R["T"]
    SEL, ONES, CAUS, MEMM = R["SEL"], R["ONES"], R["CAUS"], R["MEMM"]
    VL, VML = R["VL"], R["VML"]
    a(f"s_add_u32 s40, {sK}, 0x1000000")
    a(f"s_add_u32 s41, s40, 0x20000")
    a(f"s_add_u32 s42, {sK}, 0x20000")
    a(f"s_add_u32 s43, s40, 0x1000000")
    a(f"s_add_u32 s44, s43, 0x20000")
    a(f"s_add_u32 s45, {sM}, {hex(KVMV-KVMK)}")
    for ks in range(4):
        a(f"buffer_load_dwordx4 {vr(K+4*ks,4)}, v{VL}, s[8:11], s40 offen offset:{ks*1024}")
        a(f"buffer_load_dwordx4 {vr(Q+4*ks,4)}, v{VL}, s[8:11], {sK} offen offset:{ks*1024}")
        a(f"buffer_load_dwordx4 {vr(KM+4*ks,4)}, v{VML}, s[12:15], {sM} offen offset:{ks*512}")
        a(f"buffer_load_dwordx4 {vr(K+16+4*ks,4)}, v{VL}, s[8:11], s41 offen offset:{ks*1024}")
        a(f"buffer_load_dwordx4 {vr(Q+16+4*ks,4)}, v{VL}, s[8:11], s42 offen offset:{ks*1024}")
    for ks in range(4):
        a(f"buffer_load_dwordx4 {vr(V+4*ks,4)}, v{VL}, s[8:11], s43 offen offset:{ks*1024}")
        a(f"buffer_load_dwordx4 {vr(V+16+4*ks,4)}, v{VL}, s[8:11], s44 offen offset:{ks*1024}")
        a(f"buffer_load_dwordx4 {vr(VM+4*ks,4)}, v{VML}, s[12:15], s45 offen offset:{ks*512}")
    a("s_waitcnt vmcnt(12)")
    tiles = [(0, K, CAUS), (0, KM, MEMM), (1, K, None), (1, K + 16, CAUS), (1, KM, MEMM)]
    for ks in range(4):
        for i, (qt, kb, msk) in enumerate(tiles):
            d = S + 4 * i
            c = (vr(msk, 4) if msk is not None else "0") if ks == 0 else vr(d, 4)
            a(f"v_mfma_f32_16x16x32_bf16 {vr(d,4)}, {vr(kb+4*ks,4)}, {vr(Q+16*qt+4*ks,4)}, {c}")
    a("s_waitcnt vmcnt(0)")
    for et in range(8):
        ks, hf = et // 2, et % 2
        for tt in range(2):
            d = O + 4 * tt
            a(f"v_mfma_f32_16x16x16_bf16 {vr(d,4)}, {vr(V+16*tt+4*ks+2*hf,2)}, {vr(SEL,2)}, 0")
        d = O + 8
        a(f"v_mfma_f32_16x16x16_bf16 {vr(d,4)}, {vr(VM+4*ks+2*hf,2)}, {vr(SEL,2)}, 0")
        for tt in range(2):
            d = O + 4 * tt
            a(f"v_cvt_pk_bf16_f32 v{VT+4*et+2*tt}, v{d}, v{d+1}")
            a(f"v_cvt_pk_bf16_f32 v{VT+4*et+2*tt+1}, v{d+2}, v{d+3}")
        d = O + 8
        a(f"v_cvt_pk_bf16_f32 v{VMT+2*et}, v{d}, v{d+1}")
        a(f"v_cvt_pk_bf16_f32 v{VMT+2*et+1}, v{d+2}, v{d+3}")
    for qt, regs in ((0, list(range(S, S + 8))), (1, list(range(S + 8, S + 20)))):
        for i in range(0, len(regs), 4):
            pass
        a(f"v_max3_f32 v{T}, v{regs[0]}, v{regs[1]}, v{regs[2]}")
        i = 3
        while i + 1 < len(regs):
            a(f"v_max3_f32 v{T}, v{T}, v{regs[i]}, v{regs[i+1]}")
            i += 2
        if i < len(regs):
            a(f"v_max_f32 v{T}, v{T}, v{regs[i]}")
        a(f"v_mov_b32 v{T+1}, v{T}")
        a(f"v_permlane32_swap_b32 v{T}, v{T+1}")
        a(f"v_max_f32 v{T}, v{T}, v{T+1}")
        a(f"v_mov_b32 v{T+1}, v{T}")
        a(f"v_permlane16_swap_b32 v{T}, v{T+1}")
        a(f"v_max_f32 v{T}, v{T}, v{T+1}")
        a(f"v_mul_f32 v{T}, s46, v{T}")
        for r in regs:
            a(f"v_fma_f32 v{r}, v{r}, s46, -v{T}")
        for r in regs:
            a(f"v_exp_f32 v{r}, v{r}")
        p = P + 6 * qt
        if qt == 0:
            a(f"v_cvt_pk_bf16_f32 v{p}, v{S}, v{S+1}")
            a(f"v_cvt_pk_bf16_f32 v{p+1}, v{S+2}, v{S+3}")
            a(f"v_mov_b32 v{p+2}, 0")
            a(f"v_mov_b32 v{p+3}, 0")
            a(f"v_cvt_pk_bf16_f32 v{p+4}, v{S+4}, v{S+5}")
            a(f"v_cvt_pk_bf16_f32 v{p+5}, v{S+6}, v{S+7}")
        else:
            for j in range(6):
                a(f"v_cvt_pk_bf16_f32 v{p+j}, v{S+8+2*j}, v{S+9+2*j}")
    for qt in range(2):
        p = P + 6 * qt
        sm = S + 4 * qt
        a(f"v_mfma_f32_16x16x32_bf16 {vr(sm,4)}, {vr(ONES,4)}, {vr(p,4)}, 0")
        a(f"v_mfma_f32_16x16x16_bf16 {vr(sm,4)}, {vr(ONES,2)}, {vr(p+4,2)}, {vr(sm,4)}")
        for et in range(8):
            d = O + 32 * qt + 4 * et
            a(f"v_mfma_f32_16x16x32_bf16 {vr(d,4)}, {vr(VT+4*et,4)}, {vr(p,4)}, 0")
        for et in range(8):
            d = O + 32 * qt + 4 * et
            a(f"v_mfma_f32_16x16x16_bf16 {vr(d,4)}, {vr(VMT+2*et,2)}, {vr(p+4,2)}, {vr(d,4)}")
    for qt in range(2):
        sm = S + 4 * qt
        a(f"v_rcp_f32 v{T}, v{sm}")
        so = sK if qt == 0 else "s42"
        for ks in range(4):
            d = O + 32 * qt + 8 * ks
            for j in range(8):
                a(f"v_mul_f32 v{d+j}, v{d+j}, v{T}")
            e = Q + 16 * qt + 4 * ks
            for j in range(4):
                a(f"v_cvt_pk_bf16_f32 v{e+j}, v{d+2*j}, v{d+2*j+1}")
            a(f"buffer_store_dwordx4 {vr(e,4)}, v{VL}, s[16:19], {so} offen offset:{ks*1024}{flags}")


ATT_R = dict(SEL=4, ONES=8, CAUS=12, MEMM=16, T=20, VL=24, VML=25,
             Q=28, K=60, V=92, KM=124, VM=140, S=156, VT=176, VMT=208, P=224,
             O=None)


def attn_kernel(a, name):
    head(a, name)
    R = dict(ATT_R)
    R["O"] = 60
    a("s_cmp_ge_u32 s2, 512")
    a(f"s_cbranch_scc1 {name}_exit")
    a(f"s_load_dwordx2 s[4:5], s[0:1], {KA_WS}")
    a("v_lshrrev_b32 v2, 6, v0")
    a("v_readfirstlane_b32 s20, v2")
    a("v_and_b32 v1, 63, v0")
    attn_consts(a, R["SEL"], R["ONES"], R["CAUS"], R["MEMM"], R["T"])
    a(f"v_lshlrev_b32 v{R['VL']}, 4, v1")
    a(f"v_lshl_add_u32 v{R['T']}, v3, 3, v2")
    a(f"v_lshlrev_b32 v{R['T']}, 4, v{R['T']}")
    a(f"v_mov_b32 v{R['T']+1}, 0x80000000")
    a("v_cmp_gt_u32 vcc, 8, v2")
    a(f"v_cndmask_b32 v{R['VML']}, v{R['T']+1}, v{R['T']}, vcc")
    a("s_mov_b32 s46, 0x3e0293ee")
    a("s_waitcnt lgkmcnt(0)")
    srd(a, 8, 4, QT, 0x3000000)
    srd(a, 12, 4, KVMK, 0x800000)
    srd(a, 16, 4, OF, 0x1000000)
    a("s_lshr_b32 s21, s2, 3")
    a("s_and_b32 s22, s2, 7")
    a("s_lshl_b32 s22, s22, 2")
    a("s_add_u32 s22, s22, s20")
    a("s_lshl_b32 s24, s21, 18")
    a("s_lshl_b32 s25, s22, 12")
    a("s_add_u32 s24, s24, s25")
    a("s_lshl_b32 s25, s21, 5")
    a("s_add_u32 s25, s25, s22")
    a("s_lshl_b32 s25, s25, 11")
    attn_unit(a, R, "s24", "s25")
    a("s_waitcnt vmcnt(0)")
    a.label(f"{name}_exit")
    a("s_endpgm")
```

```python
XN   = 0x0000000
QT   = 0x0400000
KT   = 0x1400000
VT   = 0x2400000
KVMK = 0x3400000
KVMV = 0x3800000
OF   = 0x3C00000
HB   = 0x4C00000
HN   = 0x5000000
GF   = 0x5400000
COMM = 0x6400000
CNT  = 0x6600000
DBGW = 0x6700000
SLOT = 0x80000
C_PART = 0x00000
C_MEM  = 0x40000
C_X    = 0x50000
C_V    = 0x70000
WS_BYTES = 268435456

KA_X, KA_MEM0, KA_WQ, KA_WK, KA_WV, KA_WO, KA_SEG, KA_BX, KA_W1, KA_W3, KA_W2, KA_OUT, KA_DBG, KA_WS = [8 * i for i in range(14)]
```

```python
import sys, json
from asmgen import Asm
from chain import Chain
from layout import *
import kernels as K

def build(chain_kw=None, timing=False, only=None):
    a = Asm()
    launches = []
    descs = []
    def add(name, grid, lds, vgpr=512, accum=256):
        launches.append(f"; @launch kernel={name} grid=({grid},1,1) block=(256,1,1) lds={lds}")
        descs.append(K.kernel_desc(name, vgpr, accum))
    K.ln_kernel(a, "ln1_kernel", True); add("ln1_kernel", 128, 1024, 128, 128)
    l = K.kv_kernel(a, "kv_kernel"); add("kv_kernel", 256, l)
    l = K.q_kernel(a, "q_kernel"); add("q_kernel", 256, l)
    K.head(a, "chain_kernel")
    Chain(a, "ch", timing=timing, nsteps=64, **(chain_kw or {})).emit()
    add("chain_kernel", 256, 131072)
    K.attn_kernel(a, "attn_kernel"); add("attn_kernel", 512, 0, 256, 256)
    l = K.op_kernel(a, "op_kernel"); add("op_kernel", 256, l)
    K.ln_kernel(a, "ln2_kernel", False); add("ln2_kernel", 128, 1024, 128, 128)
    l = K.f1_kernel(a, "f1_kernel"); add("f1_kernel", 256, l)
    l = K.f2_kernel(a, "f2_kernel"); add("f2_kernel", 256, l)
    hdr = "\n".join(launches) + "\n"
    txt = hdr + '.amdgcn_target "amdgcn-amd-amdhsa--gfx950"\n.text\n' + a.text(verbose=True)
    txt += '.section .rodata,"a"\n.p2align 6\n' + "".join(descs)
    return txt

if __name__ == "__main__":
    out = sys.argv[1]
    kw = json.loads(sys.argv[2]) if len(sys.argv) > 2 else {}
    t = build(**kw)
    open(out, "w").write(t)
    print(out, len(t), "bytes")
```
